```python
import torch

def _softmax(x, axis=-1):
    return torch.softmax(x, dim=axis)

def _gelu(x):
    return torch.nn.functional.gelu(x, approximate='tanh')

def _silu(x):
    return torch.nn.functional.silu(x)

def _sigmoid(x):
    return torch.sigmoid(x)

def _layernorm(x, axis=-1, eps=1e-05):
    m = x.mean(dim=axis, keepdim=True)
    v = x.var(dim=axis, keepdim=True, unbiased=False)
    return (x - m) / torch.sqrt(v + eps)

def _scatter_add(tgt, idx, src, axis=0):
    return tgt.clone().index_add_(axis, idx, src)

def _segment_sum(src, seg, n):
    out = torch.zeros((n,) + src.shape[1:], dtype=src.dtype)
    return out.index_add_(0, seg, src)

def _pad(x, pw):
    flat = tuple((v for pair in reversed(pw) for v in pair))
    return torch.nn.functional.pad(x, flat)
kernel_name = 'standalone__conformer_family_zipformer__speech'

def setup_inputs():

    _w = lambda a: (lambda t: t.to(torch.bfloat16) if t.is_floating_point() else t)(torch.as_tensor(a))
    B, T, D, K, H = (2, 4000, 256, 15, 4)
    sc = 0.1
    return {'x': _w((lambda *s: torch.randn(*s, dtype=torch.bfloat16) * 0.8)(B, T, D)), 'w_ff1a': _w((lambda *s: torch.randn(*s, dtype=torch.bfloat16) * 0.8)(D, 4 * D) * sc), 'w_ff1b': _w((lambda *s: torch.randn(*s, dtype=torch.bfloat16) * 0.8)(4 * D, D) * sc), 'w_qkv': _w((lambda *s: torch.randn(*s, dtype=torch.bfloat16) * 0.8)(D, 3 * D) * sc), 'w_o': _w((lambda *s: torch.randn(*s, dtype=torch.bfloat16) * 1.6)(D, D) * sc), 'w_pw1': _w((lambda *s: torch.randn(*s, dtype=torch.bfloat16) * 1.6)(D, 2 * D) * sc), 'dw': _w((lambda *s: torch.randn(*s, dtype=torch.bfloat16) * 0.4)(K, D)), 'w_pw2': _w((lambda *s: torch.randn(*s, dtype=torch.bfloat16) * 0.4)(D, D) * sc), 'w_ff2a': _w((lambda *s: torch.randn(*s, dtype=torch.bfloat16) * 0.8)(D, 4 * D) * sc), 'w_ff2b': _w((lambda *s: torch.randn(*s, dtype=torch.bfloat16) * 0.8)(4 * D, D) * sc)}

def reference(x, w_ff1a, w_ff1b, w_qkv, w_o, w_pw1, dw, w_pw2, w_ff2a, w_ff2b):
    B, T, D = x.shape
    K = dw.shape[0]
    H = 4
    Dh = D // H
    h = _layernorm(x, axis=-1)
    h = _silu(h @ w_ff1a) @ w_ff1b
    x = x + 0.5 * h
    h = _layernorm(x, axis=-1)
    qkv = h @ w_qkv
    q = (lambda x, *d: x.permute(*d))(qkv[..., :D].reshape(B, T, H, Dh), 0, 2, 1, 3)
    k = (lambda x, *d: x.permute(*d))(qkv[..., D:2 * D].reshape(B, T, H, Dh), 0, 2, 1, 3)
    v = (lambda x, *d: x.permute(*d))(qkv[..., 2 * D:].reshape(B, T, H, Dh), 0, 2, 1, 3)
    scale = Dh ** (-0.5)
    scores = torch.einsum('bhqd,bhkd->bhqk', q, k) * scale
    p = _softmax(scores, axis=-1)
    att = torch.einsum('bhqk,bhkd->bhqd', p, v)
    att = (lambda x, *d: x.permute(*d))(att, 0, 2, 1, 3).reshape(B, T, D)
    x = x + att @ w_o
    h = _layernorm(x, axis=-1)
    h = h @ w_pw1
    a, b = (h[..., :D].clone(), h[..., D:].clone())
    h = a * _sigmoid(b)
    pad = K // 2
    hp = _pad(h, ((0, 0), (pad, pad), (0, 0)))
    c = torch.zeros_like(h)
    for i in range(K):
        c = c + hp[:, i:i + T, :] * dw[i][None, None, :]
    x = x + _silu(c) @ w_pw2
    h = _layernorm(x, axis=-1)
    h = _silu(h @ w_ff2a) @ w_ff2b
    x = x + 0.5 * h
    return _layernorm(x, axis=-1)
```

```python
import re

REG = re.compile(r'^(-|\|)?(v|a|s)(\d+|\[(\d+):(\d+)\])\|?$')

def regs_of(tok):
    tok = tok.strip()
    if tok.startswith('abs(') or tok.startswith('-abs('):
        tok = tok[tok.index('(') + 1:-1]
    if tok in ('vcc', 'vcc_lo', 'vcc_hi'): return [('x', 'vcc')]
    if tok in ('exec', 'exec_lo', 'exec_hi'): return [('x', 'exec')]
    if tok == 'm0': return [('x', 'm0')]
    if tok == 'scc': return [('x', 'scc')]
    m = REG.match(tok)
    if not m: return []
    c = m.group(2)
    if m.group(4) is not None:
        return [(c, i) for i in range(int(m.group(4)), int(m.group(5)) + 1)]
    return [(c, int(m.group(3)))]

TRANS = ('v_exp_f32', 'v_log_f32', 'v_rcp_f32', 'v_rsq_f32', 'v_sqrt_f32', 'v_sin_f32', 'v_cos_f32')

class Ins:
    __slots__ = ('text', 'op', 'defs', 'uses', 'kind', 'passes', 'srcC', 'srcAB', 'dpp', 'tag', 'key', 'target',
                 'wide_store', 'data', 'wv', 'wl', 'nop', 'waittags', 'nowait', 'sg_uses', 'lds_dma')
    def __init__(self, text, tag=None, key=None):
        self.text = text; self.tag = tag; self.key = key; self.target = None
        self.wv = None; self.wl = None; self.nop = 0; self.waittags = None; self.nowait = False
        self.passes = 0; self.srcC = []; self.srcAB = []; self.dpp = False; self.wide_store = False; self.data = []
        self.lds_dma = False
        t = text.split(';')[0].strip()
        if t.endswith(':'):
            self.op = 'label'; self.kind = 'label'; self.defs = []; self.uses = []; self.target = t[:-1]; return
        sp = t.split(None, 1)
        op = sp[0]; self.op = op
        rest = sp[1] if len(sp) > 1 else ''
        ops = [o.strip() for o in rest.split(',')] if rest else []
        mods = ''
        if ops:
            last = ops[-1].split(None, 1)
            if len(last) > 1 and not op.startswith('s_waitcnt'):
                ops[-1] = last[0]; mods = last[1]
        R = [regs_of(o) for o in ops]
        allr = lambda l: [r for x in l for r in x]
        d = []; u = []
        base = re.sub(r'_(e32|e64|dpp|sdwa)$', '', op)
        if op.startswith('buffer_load') or op.startswith('global_load'):
            self.kind = 'vmem'
            if re.search(r'\blds\b', mods) or '_lds_' in op:
                u = allr(R) + [('x', 'm0')]; self.lds_dma = True
            else:
                d = R[0]; u = allr(R[1:])
        elif op.startswith('buffer_store') or op.startswith('global_store') or op.startswith('buffer_atomic') or op.startswith('global_atomic'):
            self.kind = 'vmem'; u = allr(R)
            self.data = R[0] if op.startswith('buffer') else R[1]
            self.wide_store = len(self.data) >= 3
        elif op.startswith('ds_read') or op.startswith('ds_bpermute') or op.startswith('ds_swizzle') or op.startswith('ds_permute'):
            self.kind = 'ds'; d = R[0]; u = allr(R[1:])
        elif op.startswith('ds_write'):
            self.kind = 'ds'; u = allr(R); self.data = allr(R[1:])
        elif op.startswith('v_mfma'):
            self.kind = 'mfma'; d = R[0]; u = allr(R[1:]); self.srcC = R[3]; self.srcAB = R[1] + R[2]
            self.passes = 8 if '32x32x16' in op else (4 if '16x16x32' in op else None)
            assert self.passes, op
        elif op.startswith('v_'):
            self.kind = 'valu'
            if base.startswith('v_cmpx'):
                d = R[0] + [('x', 'exec')]; u = allr(R[1:])
            elif base.startswith('v_cmp'):
                d = R[0]; u = allr(R[1:])
            elif base.startswith('v_permlane') and 'swap' in base:
                d = R[0] + R[1]; u = R[0] + R[1]
            elif base in ('v_add_co_u32', 'v_sub_co_u32', 'v_addc_co_u32', 'v_subb_co_u32'):
                d = R[0] + R[1]; u = allr(R[2:])
            elif base in ('v_fmac_f32', 'v_pk_fmac_f16', 'v_writelane_b32', 'v_dot2c_f32_bf16'):
                d = R[0]; u = allr(R)
            elif base == 'v_nop':
                pass
            else:
                d = R[0]; u = allr(R[1:])
            if re.search(r'(row_|quad_perm|wave_|bcast)', mods):
                self.dpp = True; u = u + d
        elif op.startswith('s_'):
            self.kind = 'salu'
            if op.startswith('s_load') or op.startswith('s_buffer_load') or op in ('s_memtime', 's_memrealtime'):
                self.kind = 'smem'; d = R[0]; u = allr(R[1:])
            elif op.startswith('s_cmp') or op.startswith('s_bitcmp'):
                d = [('x', 'scc')]; u = allr(R)
            elif op.startswith('s_cbranch') or op == 's_branch':
                self.kind = 'branch'; self.target = ops[0]
                if 'scc' in op: u = [('x', 'scc')]
                elif 'vcc' in op: u = [('x', 'vcc')]
                elif 'exec' in op: u = [('x', 'exec')]
            elif op == 's_waitcnt':
                self.kind = 'wait'
                m = re.search(r'vmcnt\((\d+)\)', rest); self.wv = int(m.group(1)) if m else None
                m = re.search(r'lgkmcnt\((\d+)\)', rest); self.wl = int(m.group(1)) if m else None
            elif op == 's_barrier': self.kind = 'barrier'
            elif op == 's_nop': self.kind = 'nop'
            elif op == 's_endpgm': self.kind = 'end'
            elif op in ('s_setprio', 's_sleep'): pass
            elif 'saveexec' in op:
                d = R[0] + [('x', 'exec'), ('x', 'scc')]; u = allr(R[1:]) + [('x', 'exec')]
            elif op in ('s_cselect_b32', 's_cselect_b64', 's_addc_u32', 's_subb_u32'):
                d = R[0] + ([('x', 'scc')] if 'c_u32' in op or 'b_u32' in op else []); u = allr(R[1:]) + [('x', 'scc')]
            elif op in ('s_addk_i32', 's_mulk_i32'):
                d = R[0] + [('x', 'scc')]; u = R[0]
            elif op in ('s_mov_b32', 's_mov_b64', 's_movk_i32', 's_mul_i32', 's_getpc_b64', 's_mul_hi_u32'):
                d = R[0]; u = allr(R[1:])
            else:
                d = R[0] + [('x', 'scc')]; u = allr(R[1:])
        else:
            raise ValueError('unknown op ' + text)
        self.defs = d; self.uses = u

class Prog:
    def __init__(self, name):
        self.name = name; self.ins = []; self.cfgs = [{}]
    def __call__(self, text, **kw):
        for line in text.split('\n'):
            line = line.strip()
            if not line or line.startswith(';'): continue
            self.ins.append(Ins(line, **kw))
        return self.ins[-1]
    def add(self, lst):
        for x in lst:
            if isinstance(x, Ins): self.ins.append(x)
            else: self(x)
    def waitfor(self, *tags):
        i = Ins('s_waitcnt vmcnt(63)'); i.kind = 'tagwait'; i.waittags = set(tags); i.wv = None
        self.ins.append(i); return i
    def barrier(self, nowait=False):
        i = Ins('s_barrier'); i.nowait = nowait; self.ins.append(i)

    def trace(self, cfg):
        lab = {i.target: n for n, i in enumerate(self.ins) if i.kind == 'label'}
        cnt = {}; out = []; pc = 0
        while pc < len(self.ins):
            i = self.ins[pc]; out.append(pc)
            if len(out) > 400000: raise RuntimeError('trace too long')
            if i.kind == 'end': break
            if i.kind == 'branch':
                tgt = lab[i.target]
                if i.op == 's_branch': pc = tgt; continue
                c = cnt.get(pc, 0); cnt[pc] = c + 1
                key = i.key or i.target
                if key in cfg:
                    dec = cfg[key]; taken = dec[min(c, len(dec) - 1)]
                elif tgt <= pc:
                    taken = (c % 3) < 2
                else:
                    taken = False
                if taken: pc = tgt; continue
            pc += 1
        return out

    def solve(self):
        traces = [self.trace(c) for c in self.cfgs]
        covered = set(p for t in traces for p in t)
        for n, i in enumerate(self.ins):
            if n not in covered and i.kind not in ('label',):
                raise RuntimeError(f'{self.name}: instruction not covered by any trace: {n} {i.text}')
        need_v = {}; need_l = {}
        changed = True
        while changed:
            changed = False
            for t in traces:
                vq = []; lq = []
                for pc in t:
                    i = self.ins[pc]
                    nv = need_v.get(pc); nl = need_l.get(pc)
                    touch = set(i.uses) | set(i.defs)
                    want_v = None; want_l = None
                    if i.kind == 'tagwait':
                        for k, e in enumerate(vq):
                            if e[1] in i.waittags: want_v = len(vq) - 1 - k
                    elif i.kind not in ('label', 'wait'):
                        for k, e in enumerate(vq):
                            if e[0] & touch: want_v = len(vq) - 1 - k
                        for k, e in enumerate(lq):
                            if e[0] & touch:
                                want_l = 0 if any(x[2] for x in lq) else len(lq) - 1 - k
                        if i.kind == 'barrier' and lq and not i.nowait: want_l = 0
                    if want_v is not None:
                        want_v = min(want_v, 63)
                        if nv is None or want_v < nv: need_v[pc] = nv = want_v; changed = True
                    if want_l is not None:
                        want_l = min(want_l, 15)
                        if nl is None or want_l < nl: need_l[pc] = nl = want_l; changed = True
                    if i.kind == 'wait': nv = i.wv; nl = i.wl
                    if nv is not None and len(vq) > nv: vq = vq[len(vq) - nv:] if nv else []
                    if nl is not None and len(lq) > nl: lq = lq[len(lq) - nl:] if nl else []
                    if i.kind == 'vmem':
                        vq.append((set(i.defs), i.tag, False))
                        if len(vq) > 63:
                            raise RuntimeError(f'{self.name}: more than 63 vmem outstanding at {pc}: {i.text}')
                    elif i.kind == 'ds': lq.append((set(i.defs), i.tag, False))
                    elif i.kind == 'smem': lq.append((set(i.defs), i.tag, True))
        self.need_v = need_v; self.need_l = need_l
        nop = {}
        def states(pc):
            i = self.ins[pc]
            if i.kind == 'label': return 0
            if i.kind == 'tagwait': return 1 if pc in need_v else 0
            if i.kind == 'nop': return int(i.text.split()[1]) + 1
            return 1
        isv = lambda r: r[0] in 'va'
        changed = True
        while changed:
            changed = False
            for t in traces:
                hist = []
                pos = 0
                for pc in t:
                    c = self.ins[pc]
                    if c.kind in ('label', 'tagwait'):
                        pos += states(pc); continue
                    pre = nop.get(pc, 0) + (1 if (pc in need_v or pc in need_l) else 0)
                    here = pos + pre
                    req = 0
                    cu = set(c.uses); cd = set(c.defs)
                    for (p, pp) in hist:
                        dist = here - pp - 1
                        w = 0
                        pd = set(p.defs)
                        if p.kind == 'valu':
                            vd = {r for r in pd if isv(r)}
                            sd = {r for r in pd if r[0] == 's' or r == ('x', 'vcc')}
                            if c.kind == 'mfma' and vd & cu: w = max(w, 2)
                            if c.kind == 'valu':
                                if vd & cu:
                                    if c.dpp or c.op.startswith('v_permlane'): w = max(w, 2)
                                    if c.op.startswith('v_readlane') or c.op.startswith('v_readfirstlane'): w = max(w, 1)
                                    if re.sub(r'_(e32|e64)$', '', p.op) in TRANS: w = max(w, 1)
                                if sd & cu: w = max(w, 4 if 'lane_b32' in c.op and 'first' not in c.op else 2)
                                if ('x', 'exec') in pd: w = max(w, 5)
                            if c.kind in ('vmem', 'ds'):
                                if sd & cu: w = max(w, 5)
                                if vd & cu and re.sub(r'_(e32|e64)$', '', p.op) in TRANS: w = max(w, 1)
                            if c.kind in ('salu', 'branch', 'smem') and sd & cu: w = max(w, 5 if c.kind != 'salu' else 2)
                            if c.kind == 'mfma' and ('x', 'exec') in pd: w = max(w, 4)
                        elif p.kind == 'mfma':
                            big = p.passes == 8
                            if c.kind == 'mfma':
                                if pd & set(c.srcAB): w = max(w, 12 if big else 8)
                                if pd & set(c.srcC):
                                    if not (p.defs == c.srcC and p.passes == c.passes): w = max(w, 10 if big else 6)
                                elif pd & cd: w = max(w, 10 if big else 6)
                            elif c.kind in ('valu', 'vmem', 'ds'):
                                if pd & (cu | cd): w = max(w, 12 if big else 8)
                                if c.kind == 'valu' and set(p.srcC) & cd: w = max(w, 7 if big else 3)
                                if c.kind != 'valu' and set(p.srcC) & cd: w = max(w, 7 if big else 3)
                        elif p.kind == 'vmem':
                            if p.wide_store and set(p.data) & cd: w = max(w, 2)
                        elif p.kind == 'salu':
                            if ('x', 'm0') in pd and ('x', 'm0') in cu and c.kind in ('vmem', 'ds'): w = max(w, 1)
                        if w > dist: req = max(req, w - dist)
                    if req > 0:
                        nop[pc] = nop.get(pc, 0) + req; changed = True; here += req
                    hist.append((c, here))
                    pos = here + states(pc)
                    while hist and pos - hist[0][1] > 24: hist.pop(0)
        self.nops = nop

    def emit(self, align=True):
        self.solve()
        out = []
        for pc, i in enumerate(self.ins):
            if i.kind == 'label': out.append(i.text); continue
            nv = self.need_v.get(pc); nl = self.need_l.get(pc)
            if nv is not None or nl is not None:
                out.append('    s_waitcnt' + (f' vmcnt({nv})' if nv is not None else '') + (f' lgkmcnt({nl})' if nl is not None else ''))
            if i.kind == 'tagwait': continue
            n = self.nops.get(pc, 0)
            while n > 0:
                k = min(n, 16); out.append(f'    s_nop {k - 1}'); n -= k
            out.append('    ' + i.text)
        if align and getattr(self, 'align', True): out = align8(out)
        return '\n'.join(out) + '\n'
    def stats(self):
        from collections import Counter
        c = Counter(i.kind for i in self.ins)
        return dict(c), 'waits', len(set(self.need_v) | set(self.need_l)), 'nops', sum(self.nops.values()), len(self.nops)

def vr(b, n=1, c='v'):
    return f'{c}{b}' if n == 1 else f'{c}[{b}:{b + n - 1}]'
def ar(b, n=1): return vr(b, n, 'a')
def sr(b, n=1): return vr(b, n, 's')

def weave(main, side, start=0, every=1, per=1):
    out = []; k = 0
    for n, x in enumerate(main):
        out.append(x)
        if n >= start and (n - start) % every == every - 1:
            out.extend(side[k:k + per]); k += per
    out.extend(side[k:])
    return out

def spread(main, side, lo=0, hi=None):
    hi = len(main) if hi is None else hi
    n = hi - lo; out = list(main[:lo]); k = 0
    for j in range(n):
        out.append(main[lo + j])
        kk = (len(side) * (j + 1)) // n
        out.extend(side[k:kk]); k = kk
    out.extend(main[hi:])
    return out

VOP12 = ('v_add_f32', 'v_sub_f32', 'v_subrev_f32', 'v_mul_f32', 'v_max_f32', 'v_min_f32', 'v_exp_f32', 'v_rcp_f32', 'v_rsq_f32', 'v_log_f32',
         'v_mov_b32', 'v_and_b32', 'v_or_b32', 'v_xor_b32', 'v_lshlrev_b32', 'v_lshrrev_b32', 'v_ashrrev_i32', 'v_add_u32', 'v_sub_u32',
         'v_fmac_f32', 'v_mul_u32_u24', 'v_cvt_f32_u32', 'v_cvt_u32_f32', 'v_cndmask_b32', 'v_subrev_u32', 'v_max_i32', 'v_min_i32', 'v_max_u32', 'v_min_u32')
NOE64 = ('v_readfirstlane_b32', 'v_permlane32_swap_b32', 'v_permlane16_swap_b32', 'v_nop')
def is_lit(o):
    o = o.strip()
    if re.match(r'^-?(0x[0-9a-fA-F]+|\d+)$', o):
        v = int(o, 0)
        if -16 <= v <= 64: return False
        if v in (0x3f000000, 0xbf000000, 0x3f800000, 0xbf800000, 0x40000000, 0xc0000000, 0x40800000, 0xc0800000, 0x3e22f983): return False
        return True
    if re.match(r'^-?\d+\.\d*$', o): return float(o) not in (0.5, -0.5, 1.0, -1.0, 2.0, -2.0, 4.0, -4.0, 0.0)
    return False
def isize(line):
    t = line.split(';')[0].strip()
    if t.endswith(':') or t.startswith('.'): return 0, False
    sp = t.split(None, 1); op = sp[0]; rest = sp[1] if len(sp) > 1 else ''
    ops = [o.strip() for o in rest.split(',')]
    if op.startswith('s_'):
        if op.startswith('s_load') or op.startswith('s_buffer_load') or op in ('s_memtime', 's_memrealtime'): return 8, False
        if op in ('s_waitcnt', 's_nop', 's_barrier', 's_endpgm', 's_branch', 's_setprio', 's_sleep', 's_movk_i32', 's_addk_i32', 's_mulk_i32') or op.startswith('s_cbranch') or op.startswith('s_cmpk'): return 4, False
        return (8 if any(is_lit(o) for o in ops) else 4), False
    if op in NOE64: return 4, False
    vop = op in VOP12 or (op.startswith('v_cmp') and not op.endswith('_e64') and ops[0] == 'vcc')
    if vop:
        if any(is_lit(o) for o in ops): return 8, False
        if any(o.startswith('-v') or o.startswith('|') or o.startswith('-s') for o in ops): return 8, False
        if len(ops) >= 3 and not ops[2].startswith('v'): return 8, False
        return 4, True
    return 8, False
def align8(lines):
    out = []; off = 0; run = []
    for l in lines:
        sz, pr = isize(l)
        if sz == 8 and off % 8 == 4:
            c = [k for k in run if isize(out[k])[1]]
            if c:
                k = c[-1]; t = out[k].strip().split(None, 1); out[k] = f'    {t[0]}_e64 {t[1]}'; off += 4
        out.append(l); off += sz
        if sz == 8: run = []
        elif sz == 4: run.append(len(out) - 1)
    return out
```

```python
from dsl import *
import math, struct
LOG2E = 1.4426950408889634
KSC = 2 * LOG2E
EPS = 1e-5
def fhex(x): return '0x%08x' % struct.unpack('<I', struct.pack('<f', x))[0]
WS_X1 = 0
WS_ATT = 0x400000
WS_Q = 0x800000
WS_K = 0xC00000
WS_V = 0x1000000
WS_WP = 0x1400000
WP_STREAM = 384 * 1024
BH_BYTES = 125 * 4096

def srd(p, d, lo, hi, size):
    p(f's_mov_b32 s{d}, s{lo}')
    p(f's_mov_b32 s{d+1}, s{hi}')
    p(f's_mov_b32 s{d+2}, {size}')
    p(f's_mov_b32 s{d+3}, 0x00020000')
def srd_off(p, d, lo, hi, off, size):
    p(f's_add_u32 s{d}, s{lo}, {off}')
    p(f's_addc_u32 s{d+1}, s{hi}, 0')
    p(f's_mov_b32 s{d+2}, {size}')
    p(f's_mov_b32 s{d+3}, 0x00020000')

def kernel_text(name, body):
    return f'''.globl {name}
.p2align 8
.type {name},@function
{name}:
{body}'''
def kernel_desc(name, nv=512, ao=256):
    return f'''.p2align 6
.amdhsa_kernel {name}
  .amdhsa_next_free_vgpr {nv}
  .amdhsa_next_free_sgpr 102
  .amdhsa_accum_offset {ao}
  .amdhsa_group_segment_fixed_size 0
  .amdhsa_kernarg_size 104
  .amdhsa_user_sgpr_count 2
  .amdhsa_user_sgpr_kernarg_segment_ptr 1
  .amdhsa_system_sgpr_workgroup_id_x 1
.end_amdhsa_kernel
'''

PROF_OFF = 0x3000000
class Prof:
    def __init__(self, p, on, kidx): self.p = p; self.on = on; self.k = kidx; self.n = 0
    def start(self):
        if self.on: self.p('s_memrealtime s[68:69]'); self.p('s_memtime s[70:71]'); self.n = 1
    def stamp(self):
        if self.on:
            assert self.n < 14
            self.p(f's_memtime s[{70+2*self.n}:{71+2*self.n}]'); self.n += 1
    def end(self, wave_sgpr='s3', vt=(16, 17)):
        if not self.on: return
        p = self.p; n = self.n
        p(f's_memtime s[{70+2*n}:{71+2*n}]')
        p('s_memrealtime s[98:99]')
        p('s_load_dwordx2 s[100:101], s[0:1], 96')
        p('s_waitcnt vmcnt(0) lgkmcnt(0)')
        p(f's_lshl_b32 s66, s2, 2')
        p(f's_add_u32 s66, s66, {wave_sgpr}')
        p(f's_lshl_b32 s66, s66, 7')
        p(f's_add_u32 s66, s66, {PROF_OFF + self.k*0x20000}')
        p(f'v_mov_b32 v{vt[0]}, s66')
        vals = ['s68', 's98'] + [f's{70+2*i}' for i in range(n + 1)]
        for i, v in enumerate(vals):
            p(f'v_mov_b32 v{vt[1]}, {v}')
            p(f'global_store_dword v{vt[0]}, v{vt[1]}, s[100:101] offset:{4*i}')
```

```python
from gen_common import *

K1_LDS_A = 0
K1_LDS_B = 16896
K1_LDS_C = 33792
K1_LDS_ST = 50688
K1_LDS_RED = 51712
K1_LDS = K1_LDS_RED + 98304
R1 = 5
RING = 256 - 32 * R1

def gen_k1(prof=False):
    p = Prog('k1'); pr = Prof(p, prof, 0)
    pr.start()
    S_X, S_W1, S_W2, S_WQ, S_WS = 20, 24, 28, 32, 36
    SEL_LO, SEL_HI, MASK = 40, 41, 42
    p('''
    s_cmp_ge_u32 s2, 256
    s_cbranch_scc1 K1_END
    s_load_dwordx8 s[8:15], s[0:1], 0
    s_load_dwordx2 s[16:17], s[0:1], 96
    v_lshrrev_b32 v1, 6, v0
    v_and_b32 v2, 63, v0
    v_readfirstlane_b32 s3, v1
    v_and_b32 v3, 15, v2
    v_lshrrev_b32 v4, 4, v2
    v_and_b32 v5, 31, v2
    v_lshrrev_b32 v6, 5, v2
    v_lshlrev_b32 v7, 4, v2
    s_mov_b32 s40, 0x05040100
    s_mov_b32 s41, 0x07060302
    s_mov_b32 s42, 0xffff0000
    s_mov_b32 s44, 4096
    s_mov_b32 s45, 8192
    s_mov_b32 s46, 12288
    s_mov_b32 s47, 4608
    s_mov_b32 s48, 9216
    s_lshl_b32 s4, s2, 14
    s_lshr_b32 s5, s2, 3
    s_lshl_b32 s5, s5, 2
    s_add_u32 s5, s5, s3
    s_mul_i32 s6, s5, 3072
    s_lshl_b32 s5, s5, 12
    ''')
    p('''
    v_lshl_add_u32 v8, v1, 3, v4
    v_lshlrev_b32 v9, 4, v8
    v_lshlrev_b32 v8, 9, v8
    v_lshl_add_u32 v8, v3, 4, v8
    v_mul_u32_u24 v10, 528, v3
    v_add_u32 v9, v9, v10
    ''')
    p('''
    v_lshlrev_b32 v10, 14, v6
    v_lshl_add_u32 v10, v1, 9, v10
    v_lshl_add_u32 v10, v5, 4, v10
    ''')
    srd_off(p, S_X, 8, 9, 's4', 16384)
    p('s_cmp_ge_u32 s2, 250')
    p('s_cselect_b32 s22, 0, s22')
    XR = 64
    for rg in range(2):
        for hf in range(2):
            p(f'buffer_load_dwordx4 {vr(XR + 8*rg + 4*hf, 4)}, v8, s[20:23], 0 offen offset:{rg*2048 + hf*256}')
    srd(p, S_W1, 10, 11, 524288)
    srd(p, S_W2, 12, 13, 524288)
    srd(p, S_WQ, 14, 15, 393216)
    for q in range(4): p(f'buffer_load_dwordx4 {ar(128 + 4*q, 4)}, v7, s[24:27], s5 offen offset:{q*1024}')
    for q in range(4): p(f'buffer_load_dwordx4 {ar(144 + 4*q, 4)}, v7, s[28:31], s5 offen offset:{q*1024}')
    for q in range(3): p(f'buffer_load_dwordx4 {ar(160 + 4*q, 4)}, v7, s[32:35], s6 offen offset:{q*1024}')
    p('s_cmp_ge_u32 s2, 250')
    p('s_cbranch_scc1 K1_PRE', key='pre')
    srd(p, S_WS, 16, 17, WS_WP)

    V_W1, V_W2, V_WQ = 10, 11, 12
    def loads(G):
        slot = RING + 32 * (G % R1); out = []
        if G < 16:
            for e in range(8):
                so = ['0', 's44', 's45', 's46'][e // 2]
                out.append(f'buffer_load_dwordx4 {vr(slot + 4*e, 4)}, v{V_W1}, s[24:27], {so} offen offset:{(e % 2)*2048}')
            if G < 15: out.append(f'v_add_u32 v{V_W1}, 32768, v{V_W1}')
        elif G < 32:
            r = G - 16
            for e in range(8):
                out.append(f'buffer_load_dwordx4 {vr(slot + 4*e, 4)}, v{V_W2}, s[28:31], 0 offen offset:{e*512}')
            if r < 15: out.append(f'v_add_u32 v{V_W2}, {4096 if r % 4 < 3 else 32768 - 3*4096}, v{V_W2}')
        elif G < 48:
            for e in range(8):
                so = ['0', 's47', 's48'][e // 3]
                out.append(f'buffer_load_dwordx4 {vr(slot + 4*e, 4)}, v{V_WQ}, s[32:35], {so} offen offset:{(e % 3)*1536}')
            if G < 47: out.append(f'v_add_u32 v{V_WQ}, {16*1536}, v{V_WQ}')
        return out
    p('''
    v_lshl_add_u32 v11, v1, 3, v5
    v_and_b32 v11, 31, v11
    v_lshlrev_b32 v11, 4, v11
    v_lshl_add_u32 v11, v6, 14, v11
    v_lshl_add_u32 v11, v1, 17, v11
    v_mul_u32_u24 v12, 12288, v6
    v_lshl_add_u32 v12, v1, 9, v12
    v_lshl_add_u32 v12, v5, 4, v12
    ''')
    for G in range(R1): p.add(loads(G))
    p('s_cmp_eq_u32 s3, 3')
    p('s_cselect_b32 s34, 0, s34')
    p('''
    v_mul_u32_u24 v13, 528, v6
    v_lshl_add_u32 v13, v5, 4, v13
    ''')
    F = [16, 32]
    for rg in range(2):
        for hf in range(2):
            p(f'ds_write_b128 v9, {vr(XR + 8*rg + 4*hf, 4)} offset:{K1_LDS_B + hf*16*528 + rg*64}')
    seq = [[], []]
    for rg in range(2):
        s = seq[rg]; f = F[rg]; t = 48 + 2*rg
        for k in range(8):
            s.append(f'v_lshlrev_b32 v{f + 2*k}, 16, v{XR + 8*rg + k}')
            s.append(f'v_and_b32 v{f + 2*k + 1}, s42, v{XR + 8*rg + k}')
        s.append(f'v_add_f32 v{t}, v{f}, v{f+1}')
        for k in range(2, 16): s.append(f'v_add_f32 v{t}, v{t}, v{f+k}')
        for sh in (8, 4, 2, 1): s.append(f'v_add_f32_dpp v{t}, v{t}, v{t} row_ror:{sh} row_mask:0xf bank_mask:0xf')
        s.append(f'v_mul_f32 v{t}, {fhex(1/256)}, v{t}')
        for k in range(16): s.append(f'v_sub_f32 v{f+k}, v{f+k}, v{t}')
        s.append(f'v_mul_f32 v{t}, v{f}, v{f}')
        for k in range(1, 16): s.append(f'v_fmac_f32 v{t}, v{f+k}, v{f+k}')
        for sh in (8, 4, 2, 1): s.append(f'v_add_f32_dpp v{t}, v{t}, v{t} row_ror:{sh} row_mask:0xf bank_mask:0xf')
        s.append(f'v_mov_b32 v{t+1}, {fhex(EPS)}')
        s.append(f'v_fmac_f32 v{t+1}, {fhex(1/256)}, v{t}')
        s.append(f'v_rsq_f32 v{t}, v{t+1}')
        s.append(f'v_mul_f32 v{t}, {fhex(-LOG2E)}, v{t}')
        for k in range(16): s.append(f'v_mul_f32 v{f+k}, v{f+k}, v{t}')
        for k in range(8): s.append(f'v_cvt_pk_bf16_f32 v{f+k}, v{f+2*k}, v{f+2*k+1}')
        for hf in range(2):
            s.append(f'ds_write_b128 v9, {vr(f + 4*hf, 4)} offset:{K1_LDS_A + hf*16*528 + rg*64}')
    for a, b in zip(*seq): p(a); p(b)
    pr.stamp()
    p.barrier()
    pr.stamp()

    OP = [16, 24]
    BF = [32, 36]
    def perms(G, q):
        slot = RING + 32 * (G % R1); o = OP[q % 2]; out = []
        for e2 in range(4):
            a = slot + 8*e2 + q; b = a + 4
            out.append(f'v_perm_b32 v{o + e2}, v{b}, v{a}, s40')
            out.append(f'v_perm_b32 v{o + 4 + e2}, v{b}, v{a}, s41')
        return out
    def mfmas(q, acc, B, first, swap=False):
        o = OP[q % 2]; out = []
        for u in range(2):
            d = ar(acc + 16*(2*q + u), 16); w = vr(o + 4*u, 4); b = vr(B, 4)
            a1, a2 = (b, w) if swap else (w, b)
            out.append(f'v_mfma_f32_32x32x16_bf16 {d}, {a1}, {a2}, {"0" if first else d}')
        return out
    def step(G, pend, acc, B, first, side, swap=False, ld=True):
        body = []
        for q in range(4):
            pm = perms(G, q)
            m = pend if q == 0 else mfmas(q - 1, acc, B, first, swap)
            blk = list(pm)
            if m: blk = blk[:2] + [m[0]] + blk[2:6] + [m[1]] + blk[6:]
            body += blk
        lds = loads(G - 1 + R1) if (ld and G >= 1) else []
        body = spread(body, lds, 1)
        body = spread(body, side, 2)
        return body, mfmas(3, acc, B, first, swap)

    p(f'ds_read_b128 {vr(BF[0], 4)}, v13 offset:{K1_LDS_A}')
    pend = []
    for s in range(16):
        side = [f'ds_read_b128 {vr(BF[(s+1) % 2], 4)}, v13 offset:{K1_LDS_A + (s+1)*1056}'] if s < 15 else []
        body, pend2 = step(s, pend, 0, BF[s % 2], s == 0, [])
        if side: body = body[:14] + side + body[14:]
        p.add(body); pend = pend2
    HT = 40
    HF = [56, 60]
    def silu(r):
        out = []; t = lambda j: HT + j; e = lambda j: HT + 8 + j
        st = [[f'v_accvgpr_read_b32 v{t(j)}, a{16*j + r}',
               f'v_exp_f32 v{e(j)}, v{t(j)}',
               f'v_add_f32 v{e(j)}, 1.0, v{e(j)}',
               f'v_rcp_f32 v{e(j)}, v{e(j)}',
               f'v_mul_f32 v{t(j)}, v{t(j)}, v{e(j)}'] for j in range(8)]
        for k in range(8 + 4):
            for ph in range(5):
                j = k - ph
                if 0 <= j < 8: out.append(st[j][ph])
            j = k - 4
            if 0 <= j < 8 and j % 2 == 1:
                out.append(f'v_cvt_pk_bf16_f32 v{HF[r % 2] + j//2}, v{t(j-1)}, v{t(j)}')
        return out
    pr.stamp()
    p.add(pend); pend = []
    p.add(weave(silu(0), loads(15 + R1), 0, 4))
    for r in range(16):
        side = silu(r + 1) if r < 15 else []
        G = 16 + r
        body, pend2 = step(G, pend, 128, HF[r % 2], r == 0, [], ld=(r > 0))
        body = spread(body, side, 8)
        p.add(body); pend = pend2
    p.add(pend)
    pr.stamp()
    AD = 44
    for rho in range(1, 4):
        p(f's_add_u32 s4, s3, {rho}')
        p(f's_and_b32 s4, s4, 3')
        p(f's_mul_i32 s4, s4, 24576')
        p(f's_add_u32 s4, s4, {K1_LDS_RED + (rho-1)*8192}')
        p(f'v_add_u32 v{AD + rho}, s4, v7')
    p(f's_mul_i32 s4, s3, 24576')
    p(f's_add_u32 s4, s4, {K1_LDS_RED}')
    p(f'v_add_u32 v{AD}, s4, v7')
    lds = loads(31 + R1)
    wr = []
    for j in range(8):
        for rho in range(1, 4):
            wr.append(f'ds_write_b128 v{AD + rho}, {ar(128 + 16*j + 4*rho, 4)} offset:{j*1024}')
    Y = 48
    own = [f'v_accvgpr_read_b32 v{Y + 4*j + rr}, a{128 + 16*j + rr}' for j in range(8) for rr in range(4)]
    p('''
    v_lshl_add_u32 v14, v1, 1, v6
    v_mul_u32_u24 v14, 2112, v14
    v_lshl_add_u32 v14, v5, 4, v14
    ''')
    X = 80
    xr = [f'ds_read_b128 {vr(X + 4*rr, 4)}, v14 offset:{K1_LDS_B + rr*528}' for rr in range(4)]
    p.add(xr)
    p.add(spread(spread(wr, lds), own, 3))
    p.barrier()
    pr.stamp()
    T = 16
    rd = [(sl, j) for j in range(8) for sl in range(3)]
    NT = 7
    for n in range(NT): p(f'ds_read_b128 {vr(T + 4*n, 4)}, v{AD} offset:{rd[n][0]*8192 + rd[n][1]*1024}')
    for n, (sl, j) in enumerate(rd):
        for rr in range(4): p(f'v_add_f32 v{Y + 4*j + rr}, v{Y + 4*j + rr}, v{T + 4*(n % NT) + rr}')
        if n + NT < len(rd):
            p(f'ds_read_b128 {vr(T + 4*(n % NT), 4)}, v{AD} offset:{rd[n+NT][0]*8192 + rd[n+NT][1]*1024}')
    p(f's_mov_b32 s4, {fhex(-KSC)}')
    SUM, SQ = 16, 17
    for rr in range(4):
        for k in range(4):
            p(f'v_lshlrev_b32 v18, 16, v{X + 4*rr + k}')
            p(f'v_and_b32 v19, s42, v{X + 4*rr + k}')
            a, b = Y + 4*(2*k) + rr, Y + 4*(2*k+1) + rr
            p(f'v_fmac_f32 v{a}, s4, v18')
            p(f'v_fmac_f32 v{b}, s4, v19')
            if rr == 0 and k == 0:
                p(f'v_add_f32 v{SUM}, v{a}, v{b}')
                p(f'v_mul_f32 v{SQ}, v{a}, v{a}')
            else:
                p(f'v_add_f32 v{SUM}, v{SUM}, v{a}')
                p(f'v_fmac_f32 v{SQ}, v{a}, v{a}')
                p(f'v_add_f32 v{SUM}, v{SUM}, v{b}')
            p(f'v_fmac_f32 v{SQ}, v{b}, v{b}')
    p(f'''
    v_permlane32_swap_b32 v{SUM}, v{SQ}
    v_lshl_add_u32 v18, v1, 2, v7
    v_add_f32 v{SUM}, v{SUM}, v{SQ}
    ds_write_b32 v18, v{SUM} offset:{K1_LDS_ST}
    ''')
    PK = 80
    p('''
    v_lshrrev_b32 v20, 3, v5
    v_lshlrev_b32 v20, 12, v20
    v_and_b32 v21, 7, v5
    v_lshl_add_u32 v20, v21, 4, v20
    v_lshl_add_u32 v21, v1, 1, v6
    v_lshl_add_u32 v20, v21, 9, v20
    s_lshl_b32 s4, s2, 14
    ''')
    p.barrier()
    p(f'v_lshlrev_b32 v19, 4, v5')
    p(f'ds_read_b128 v[24:27], v19 offset:{K1_LDS_ST}')
    p(f'ds_read_b128 v[28:31], v19 offset:{K1_LDS_ST + 512}')
    for rr in range(4):
        for k in range(4):
            p(f'v_cvt_pk_bf16_f32 v{PK + 4*rr + k}, v{Y + 4*(2*k) + rr}, v{Y + 4*(2*k+1) + rr}')
        p(f'buffer_store_dwordx4 {vr(PK + 4*rr, 4)}, v20, s[36:39], s4 offen offset:{rr*128}')
    p(f'''
    v_add_f32 v24, v24, v25
    v_add_f32 v28, v28, v29
    v_add_f32 v26, v26, v27
    v_add_f32 v30, v30, v31
    v_add_f32 v24, v24, v26
    v_add_f32 v28, v28, v30
    v_mul_f32 v24, {fhex(1/256)}, v24
    v_mul_f32 v25, v24, v24
    v_mov_b32 v26, {fhex(1/256)}
    v_fma_f32 v28, v28, v26, -v25
    v_max_f32 v28, 0, v28
    v_add_f32 v28, {fhex(EPS*KSC*KSC)}, v28
    v_rsq_f32 v28, v28
    v_mul_f32 v26, {fhex(-0.125*LOG2E)}, v28
    v_mul_f32 v25, v24, v28
    v_mul_f32 v27, v24, v26
    ''')
    for rr in range(4):
        for k in range(4):
            a, b = Y + 4*(2*k) + rr, Y + 4*(2*k+1) + rr
            p(f'v_fma_f32 v16, -v{a}, v28, v25')
            p(f'v_fma_f32 v17, -v{b}, v28, v25')
            p(f'v_fma_f32 v18, v{a}, v26, -v27')
            p(f'v_fma_f32 v19, v{b}, v26, -v27')
            p(f'v_cvt_pk_bf16_f32 v{32 + 8*(rr % 2) + k}, v16, v17')
            p(f'v_cvt_pk_bf16_f32 v{36 + 8*(rr % 2) + k}, v18, v19')
        p(f'ds_write_b128 v14, {vr(32 + 8*(rr % 2), 4)} offset:{K1_LDS_A + rr*528}')
        p(f'ds_write_b128 v14, {vr(36 + 8*(rr % 2), 4)} offset:{K1_LDS_C + rr*528}')
    p('''
    s_cmp_ge_u32 s2, 125
    s_cselect_b32 s5, 375, 0
    s_add_u32 s5, s5, s2
    s_lshl_b32 s5, s5, 12
    s_lshl_b32 s6, s3, 22
    s_add_u32 s5, s5, s6
    ''')
    p(f's_add_u32 s50, s5, {WS_Q}')
    for g in range(1, 4): p(f's_add_u32 s{50 + g}, s50, {g*BH_BYTES}')
    p('s_cmp_eq_u32 s3, 0')
    p(f's_cselect_b32 s4, {K1_LDS_C}, {K1_LDS_A}')
    p('v_add_u32 v13, s4, v13')
    p.barrier()
    pr.stamp()
    n0 = pr.n
    p('s_cmp_eq_u32 s3, 3')
    p('s_cbranch_scc1 K1_END', key='w3')
    p('s_cmp_eq_u32 s3, 2')
    p('s_cbranch_scc1 K1_V', key='wv')
    for swap in (False, True):
        if swap: p('K1_V:')
        p(f'ds_read_b128 {vr(BF[0], 4)}, v13')
        pend = []
        for s in range(16):
            G = 32 + s
            body, pend2 = step(G, pend, 0, BF[s % 2], s == 0, [], swap=swap, ld=(s > 0))
            if s < 15: body = body[:14] + [f'ds_read_b128 {vr(BF[(s+1) % 2], 4)}, v13 offset:{(s+1)*1056}'] + body[14:]
            p.add(body); pend = pend2
        p.add(pend)
        pr.n = n0; pr.stamp()
        E = 96
        if not swap:
            n = 0
            for s in range(4):
                for g in range(4):
                    t = E + 8*(n % 8); o = E + 64 + 4*(n % 8); n += 1
                    for u in range(2):
                        for rr in range(4): p(f'v_accvgpr_read_b32 v{t + 4*u + rr}, a{16*(2*s + u) + 4*g + rr}')
                    for k in range(4): p(f'v_cvt_pk_bf16_f32 v{o + k}, v{t + 2*k}, v{t + 2*k + 1}')
                    p(f'buffer_store_dwordx4 {vr(o, 4)}, v7, s[36:39], s{50 + g} offen offset:{s*1024}')
            pr.end()
            p('s_endpgm')
        else:
            p(f'''
            v_lshrrev_b32 v16, 3, v5
            s_mov_b32 s4, {BH_BYTES}
            v_mul_lo_u32 v16, v16, s4
            v_and_b32 v17, 7, v5
            v_lshl_add_u32 v17, v6, 5, v17
            v_lshl_add_u32 v16, v17, 4, v16
            ''')
            n = 0
            for j in range(8):
                for s in range(2):
                    t = E + 8*(n % 8); o = E + 64 + 4*(n % 8); n += 1
                    for k in range(8): p(f'v_accvgpr_read_b32 v{t + k}, a{16*j + 8*s + k}')
                    for k in range(4): p(f'v_cvt_pk_bf16_f32 v{o + k}, v{t + 2*k}, v{t + 2*k + 1}')
                    p(f'buffer_store_dwordx4 {vr(o, 4)}, v16, s[36:39], s50 offen offset:{((j//4)*2 + s)*1024 + (j % 4)*128}')
            pr.end()
            p('s_endpgm')

    p('K1_PRE:')
    p('''
    s_load_dwordx4 s[8:11], s[0:1], 32
    s_load_dwordx2 s[12:13], s[0:1], 56
    s_load_dwordx4 s[52:55], s[0:1], 64
    s_sub_u32 s4, s2, 250
    s_lshl_b32 s4, s4, 1
    s_mul_i32 s5, s3, %d
    s_lshl_b32 s6, s4, 15
    s_add_u32 s5, s5, s6
    s_add_u32 s5, s5, %d
    v_lshrrev_b32 v8, 3, v2
    v_and_b32 v9, 7, v2
    v_lshlrev_b32 v9, 4, v9
    s_lshl_b32 s7, s3, 15
    v_and_b32 v10, 3, v2
    v_lshlrev_b32 v10, 4, v10
    v_bfe_u32 v11, v2, 2, 2
    v_lshl_add_u32 v11, v4, 3, v11
    v_lshl_add_u32 v10, v11, 7, v10
    v_add_u32 v10, s7, v10
    s_mov_b32 s27, 0x00020000
    ''' % (WP_STREAM, WS_WP))
    srd(p, S_WS, 16, 17, WS_WP + 4*WP_STREAM)
    p('K1_PB:')
    p('s_waitcnt vmcnt(0)')
    p('''
    s_lshl_b32 s29, s3, 7
    s_mov_b32 s26, 131072
    s_mov_b32 s28, 512
    s_mov_b32 s30, 16384
    s_mov_b32 s31, 32768
    s_mov_b64 s[24:25], s[8:9]
    s_cmp_eq_u32 s4, 0
    s_cbranch_scc1 K1_PGO
    s_mov_b64 s[24:25], s[12:13]
    s_cmp_eq_u32 s4, 3
    s_cbranch_scc1 K1_PGO
    s_cmp_ge_u32 s4, 8
    s_cbranch_scc1 K1_PF2B
    s_cmp_ge_u32 s4, 4
    s_cbranch_scc1 K1_PF2A
    s_mov_b64 s[24:25], s[10:11]
    s_mov_b32 s26, 262144
    s_mov_b32 s28, 1024
    s_mov_b32 s30, 512
    s_sub_u32 s6, s4, 1
    s_lshl_b32 s6, s6, 17
    s_add_u32 s29, s29, s6
    s_branch K1_PGO
    K1_PF2A:
    s_mov_b64 s[24:25], s[52:53]
    s_mov_b32 s26, 524288
    s_mov_b32 s28, 2048
    s_mov_b32 s30, 65536
    s_mov_b32 s31, 131072
    s_lshl_b32 s29, s3, 9
    s_sub_u32 s6, s4, 4
    s_lshl_b32 s6, s6, 7
    s_add_u32 s29, s29, s6
    s_branch K1_PGO
    K1_PF2B:
    s_mov_b64 s[24:25], s[54:55]
    s_mov_b32 s26, 524288
    s_sub_u32 s6, s4, 8
    s_lshl_b32 s6, s6, 17
    s_add_u32 s29, s29, s6
    K1_PGO:
    v_mul_lo_u32 v11, v8, s28
    v_add_u32 v11, v11, v9
    s_lshl_b32 s28, s28, 3
    s_mov_b32 m0, s7
    ''')
    for v in range(8):
        p('s_mov_b32 s6, s29')
        for q in range(4):
            p(f'buffer_load_dwordx4 v11, s[24:27], s6 offen lds', tag=f'pu{v}')
            p(f's_add_u32 m0, m0, 1024')
            if q < 3: p('s_add_u32 s6, s6, s28')
        if v % 2 == 0: p('s_add_u32 s29, s29, s30')
        else:
            p('s_sub_u32 s29, s29, s30'); p('s_add_u32 s29, s29, s31')
    for v in range(8):
        p.waitfor(f'pu{v}')
        b = 16 + 16*(v % 2)
        for pp in range(2):
            for u in range(2):
                for hf in range(2):
                    p(f'ds_read_b64_tr_b16 {vr(b + 8*pp + 4*u + 2*hf, 2)}, v10 offset:{v*4096 + hf*512 + pp*64 + u*8}')
        for f in range(4):
            p(f'buffer_store_dwordx4 {vr(b + 4*f, 4)}, v7, s[36:39], s5 offen offset:{f*1024}')
        p('s_add_u32 s5, s5, 4096')
    p('''
    s_add_u32 s4, s4, 1
    s_bitcmp1_b32 s4, 0
    s_cbranch_scc1 K1_PB
    ''')
    pr.n = 1; pr.end()
    p('K1_END:')
    p('s_endpgm')
    p.cfgs = [{}, {'wv': [True]}, {'w3': [True]}, {'K1_END': [True]},
              {'pre': [True], 'K1_PB': [True, False], 'K1_PGO': [True, False, True]},
              {'pre': [True], 'K1_PB': [True, False], 'K1_PF2A': [True]},
              {'pre': [True], 'K1_PB': [True, False], 'K1_PF2B': [True]},
              {'pre': [True], 'K1_PB': [True, False]}]
    return p

if __name__ == '__main__':
    p = gen_k1(); t = p.emit(); print(p.stats()); print(len(t.split('\n')))
```

```python
from gen_common import *

K2_LST = 0
K2_LO = 2048
K2_LDS = K2_LO + 98304
LIMIT = 2.0 ** 30

def gen_k2(prof=False, rs16=1, inter=False, nold=False, noexp=False, align=False, wp=(3, 3, 7, 7)):
    p = Prog('k2'); pr = Prof(p, prof, 1); p.align = align
    QA = lambda t, s: ar(128 + 16*t + 4*s, 4)
    KA = lambda par, s: ar(192 + 16*par + 4*s, 4)
    VA = lambda par, f: ar(224 + 16*par + 4*f, 4)
    S = [16, 32]; P = [48, 56]; E = 64; L = 72; D = 76; SEL = 92; C = 96; O3 = 160
    def OA(t, dt): return vr(O3 + 16*dt, 16) if t == 3 else ar(32*t + 16*dt, 16)
    pr.start()
    p('''
    s_cmp_ge_u32 s2, 256
    s_cbranch_scc1 K2_END
    s_load_dwordx2 s[4:5], s[0:1], 96
    v_lshrrev_b32 v1, 6, v0
    v_and_b32 v2, 63, v0
    v_readfirstlane_b32 s3, v1
    v_lshlrev_b32 v7, 4, v2
    v_and_b32 v5, 31, v2
    v_lshrrev_b32 v6, 5, v2
    s_and_b32 s6, s2, 7
    s_lshr_b32 s7, s2, 3
    s_mul_i32 s28, s6, %d
    v_lshl_add_u32 v8, v1, 12, v7
    v_add_u32 v8, 4096, v8
    s_lshl_b32 s29, s7, 14
    ''' % BH_BYTES)
    for t in range(4):
        p(f's_add_u32 s{32+t}, s3, {t+1}')
        p(f's_and_b32 s{32+t}, s{32+t}, 3')
        p(f's_lshl_b32 s{32+t}, s{32+t}, 12')
        p(f's_add_u32 s{32+t}, s{32+t}, s29')
    p(f's_add_u32 s30, s28, {WS_K}'); srd_off(p, 12, 4, 5, 's30', BH_BYTES)
    p(f's_add_u32 s30, s28, {WS_Q}'); srd_off(p, 8, 4, 5, 's30', BH_BYTES)
    p(f's_add_u32 s30, s28, {WS_V}'); srd_off(p, 16, 4, 5, 's30', BH_BYTES)
    p('s_add_u32 s40, s12, 16384')
    p('s_addc_u32 s41, s13, 0')
    p('s_mov_b64 s[42:43], s[16:17]')
    def ldq(t): return [f'buffer_load_dwordx4 {QA(t, s)}, v7, s[8:11], s{32+t} offen offset:{s*1024}' for s in range(4)]
    def ld0():
        for s in range(4): p(f'buffer_load_dwordx4 {KA(1, s)}, v7, s[12:15], 0 offen offset:{s*1024}', tag='K1')
    def ld1():
        for s in range(4): p(f'buffer_load_dwordx4 {KA(0, s)}, v8, s[12:15], 0 offen offset:{s*1024}', tag='K0')
    def ld2():
        for s in range(4): p(f'buffer_load_dwordx4 {VA(1, s)}, v7, s[16:19], 0 offen offset:{s*1024}', tag='V1')
        for s in range(4): p(f'buffer_load_dwordx4 {VA(0, s)}, v8, s[16:19], 0 offen offset:{s*1024}', tag='V0')
    ld0(); p.add(ldq(3) + ldq(0)); ld1(); p.add(ldq(1) + ldq(2)); ld2()
    p('''
    v_lshlrev_b32 v9, 6, v2
    v_lshl_add_u32 v9, v1, 12, v9
    buffer_load_dword v10, v9, s[12:15], s29 offen
    buffer_load_dword v11, v9, s[16:19], s29 offen
    v_lshlrev_b32 v9, 7, v2
    s_lshl_b32 s30, s7, 2
    s_add_u32 s30, s30, s3
    s_mul_i32 s30, s30, 12288
    ''')
    srd_off(p, 24, 4, 5, WS_WP, 4*WP_STREAM)
    p('''
    s_add_u32 s31, s30, 8192
    buffer_load_dword v12, v9, s[24:27], s30 offen
    buffer_load_dword v13, v9, s[24:27], s31 offen
    s_mov_b32 s36, 0
    ''')
    def zero():
        out = [f'v_accvgpr_write_b32 a{r}, 0' for r in range(96)] + [f'v_mov_b32 v{O3 + r}, 0' for r in range(32)]
        out += [f'v_mov_b32 v{L + t}, 0' for t in range(4)]
        if rs16: out += [f'v_mov_b32 v{D + r}, 0' for r in range(16)]
        return out
    p.add(zero())
    if rs16:
        p(f'''
        v_lshrrev_b32 v14, 2, v2
        v_lshrrev_b32 v15, 4, v2
        v_xor_b32 v14, v14, v15
        v_and_b32 v14, 1, v14
        v_add_u32 v14, -1, v14
        v_and_b32 v{SEL}, 0x3f803f80, v14
        ''')
        for k in range(1, 4): p(f'v_mov_b32 v{SEL+k}, v{SEL}')
    p(f'''
    v_add_u32 v9, s3, v6
    v_add_u32 v14, 3, v9
    v_add_u32 v9, 1, v9
    v_and_b32 v9, 3, v9
    v_and_b32 v14, 3, v14
    v_lshlrev_b32 v15, 4, v5
    v_lshl_add_u32 v15, v1, 2, v15
    v_lshl_add_u32 v9, v9, 9, v15
    v_lshl_add_u32 v14, v14, 9, v15
    v_lshrrev_b32 v15, 3, v5
    v_lshlrev_b32 v15, 12, v15
    v_and_b32 v3, 7, v5
    v_lshl_add_u32 v15, v3, 4, v15
    v_lshl_add_u32 v15, v6, 9, v15
    ''')
    OW = [192, 193, 194]; ORD = 195; LRD = 196
    for t in range(3):
        p(f's_add_u32 s30, s3, {t+1}')
        p(f's_and_b32 s30, s30, 3')
        p(f's_mul_i32 s30, s30, 24576')
        p(f's_add_u32 s30, s30, {K2_LO + t*8192}')
        p(f'v_add_u32 v{OW[t]}, s30, v7')
    p(f'''
    s_mul_i32 s30, s3, 24576
    s_add_u32 s30, s30, {K2_LO}
    v_add_u32 v{ORD}, s30, v7
    v_lshlrev_b32 v{LRD}, 4, v5
    v_lshl_add_u32 v{LRD}, v1, 9, v{LRD}
    s_lshr_b32 s30, s6, 2
    s_mul_i32 s30, s30, {500*4096}
    s_lshl_b32 s31, s7, 2
    s_add_u32 s31, s31, s3
    s_lshl_b32 s37, s31, 14
    s_add_u32 s37, s37, s30
    s_and_b32 s30, s6, 3
    s_lshl_b32 s30, s30, 10
    s_add_u32 s37, s37, s30
    ''')
    srd_off(p, 20, 4, 5, WS_ATT, 8000*512)
    p('s_cmp_ge_u32 s31, 125')
    p('s_cselect_b32 s22, 0, s22')
    pr.stamp()

    def qk(par, t, dst, c):
        return [f'v_mfma_f32_32x32x16_bf16 {vr(dst, 16)}, {KA(par, s)}, {QA(t, s)}, {c if s == 0 else vr(dst, 16)}' for s in range(4)]
    def pv(par, t, pb):
        return [f'v_mfma_f32_32x32x16_bf16 {OA(t, dt)}, {VA(par, 2*dt + s)}, {vr(pb + 4*s, 4)}, {OA(t, dt)}' for s in range(2) for dt in range(2)]
    def rowmax(src, m):
        out = [f'v_max3_f32 v{m}, v{src}, v{src+1}, v{src+2}']
        for k in range(3, 15, 2): out.append(f'v_max3_f32 v{m}, v{m}, v{src+k}, v{src+k+1}')
        out.append(f'v_max_f32 v{m}, v{m}, v{src+15}')
        return out
    def negmax(m):
        return [f'v_mov_b32 v{m+1}, v{m}', f'v_permlane32_swap_b32 v{m}, v{m+1}', f'v_min_f32_e64 v{m}, -v{m}, -v{m+1}']
    order = [3, 0, 1, 2]
    mm = []
    for t in order: mm += qk(1, t, C + 16*t, '0')
    va = []
    for t in order:
        m = E + 2*(t % 2)
        v = rowmax(C + 16*t, m) + negmax(m)
        if t == 3: v += [f'v_add_f32 v{S[1] + r}, v{C + 48 + r}, v{m}' for r in range(16)]
        v += [f'v_mov_b32 v{C + 16*t + r}, v{m}' for r in range(16)]
        va.append(v)
    p.add(mm[:7]); p.add(spread(mm[7:], va[0] + va[1][:8], 0, 8))
    p.add(va[1][8:] + va[2] + va[3])
    p('K2_MAIN:')
    p('s_mov_b32 s28, 16384')
    p('s_mov_b32 s29, 14')
    pr.stamp()

    X = 68
    def deferred(t): return [f'v_add_f32 v{L + t}, v{L + t}, v{X + g}' for g in range(4)]
    def softmax(t, first):
        sb = S[t % 2]; pb = P[t % 2]; gaps = []
        for g in range(8):
            e0 = E + 2*(g % 2); e1 = e0 + 1
            if rs16 == 1 and g >= 4: e1 = X + g - 4
            cur = [f'v_exp_f32 v{e0}, v{sb + 2*g}', f'v_exp_f32 v{e1}, v{sb + 2*g + 1}']
            if rs16 == 0: cur += [f'v_add_f32 v{L + t}, v{L + t}, v{e0}', f'v_add_f32 v{L + t}, v{L + t}, v{e1}']
            if rs16 == 1:
                if g >= 4: cur.append(f'v_add_f32 v{L + t}, v{L + t}, v{e0}')
                elif not first: cur.append(deferred((t - 1) % 4)[g])
            cur.append(f'v_cvt_pk_bf16_f32 v{pb + g}, v{e0}, v{e1}')
            gaps.append(cur)
        return gaps
    def rsum(t, pb, s):
        return f'v_mfma_f32_16x16x32_bf16 {vr(D + 4*t, 4)}, {vr(SEL, 4)}, {vr(pb + 4*s, 4)}, {vr(D + 4*t, 4)}'
    def slot(T, t, last=False, first=False, side=None):
        par = T % 2
        nq = None if (last and t == 3) else (qk(par, t+1, S[(t+1) % 2], vr(C + 16*(t+1), 16)) if t < 3 else qk(1-par, 0, S[0], vr(C, 16)))
        pp = None if first else (pv(par, t-1, P[(t-1) % 2]) if t > 0 else pv(1-par, 3, P[1]))
        tp = (t - 1) % 4
        if nq and pp: m = [x for ab in zip(nq, pp) for x in ab] if inter else nq + pp
        else: m = (nq or []) + (pp or [])
        gaps = softmax(t, first)
        win = []
        kl = [Ins(f'global_load_dwordx4 {KA(par, s)}, v8, s[40:41] offset:{s*1024}', tag=f'K{par}') for s in range(4)]
        vl = [Ins(f'global_load_dwordx4 {VA(1-par, s)}, v8, s[42:43] offset:{s*1024}', tag=f'V{1-par}') for s in range(4)]
        if nold: kl = []; vl = []
        if noexp: gaps = [g[2:] for g in gaps]
        wpos = wp[t]
        if first: win = kl; wpos = 1
        elif t == 0 and not last: win = ['v_add_u32 v8, s28, v8'] + (['s_sub_u32 s29, s29, 1'] if par == 1 else [])
        elif t == 1: win = ([] if last else vl) + [f'V{par}']
        elif t == 2 and not last: win = kl + [f'K{1-par}']
        pre = {}; post = {}
        if pp and rs16:
            post.setdefault(wpos, []).append(rsum(tp, P[tp % 2], 0))
            if rs16 == 2: post.setdefault((wpos + 4) % 8, []).append(rsum(tp, P[tp % 2], 1))
        if first: pre[wpos] = win
        else: post.setdefault(wpos, []).extend(win)
        if side:
            for g in range(8): pre.setdefault(g, []).extend(side[(len(side)*g)//8:(len(side)*(g+1))//8])
        for g in range(8):
            k0 = (len(m)*g)//8; k1 = (len(m)*(g+1))//8
            if first: k0, k1 = g, g + 1
            for x in m[k0:k1] + pre.get(g, []) + gaps[g] + post.get(g, []):
                if isinstance(x, str) and len(x) == 2: p.waitfor(x)
                else: p.add([x])
    p.waitfor('K0')
    slot(-1, 3, first=True)
    p.waitfor('V1')
    p('K2_LOOP:')
    for T in range(2):
        for t in range(4): slot(T, t)
    p('s_cbranch_scc0 K2_LOOP')
    pr.stamp()
    ow = lambda t: [f'ds_write_b128 v{OW[t]}, {ar(32*t + 4*j, 4)} offset:{j*1024}' for j in range(8)]
    slot(0, 0, last=True); slot(0, 1, last=True); slot(0, 2, last=True, side=[None]*0 + ow(0))
    slot(0, 3, last=True, side=ow(1))
    fin = pv(0, 3, P[1])
    if rs16: fin = [rsum(3, P[1], s) for s in range(rs16)] + fin
    lx = (deferred(3) if rs16 == 1 else []) + f'''
    v_permlane32_swap_b32 v{L}, v{L+1}
    v_permlane32_swap_b32 v{L+2}, v{L+3}
    v_add_f32 v{L}, v{L}, v{L+1}
    v_add_f32 v{L+2}, v{L+2}, v{L+3}
    '''.strip().split('\n')
    if rs16:
        lx += [f'v_cmp_gt_u32 vcc, 32, v2',
               f'v_cndmask_b32 v{D}, v{D+4}, v{D}, vcc', f'v_cndmask_b32 v{D+8}, v{D+12}, v{D+8}, vcc',
               f'v_add_f32 v{L}, v{L}, v{D}', f'v_add_f32 v{L+2}, v{L+2}, v{D+8}']
    lx += [f'ds_write_b32 v9, v{L} offset:{K2_LST}', f'ds_write_b32 v14, v{L+2} offset:{K2_LST}']
    p.add(fin[:rs16 + 2]); p.add(ow(2)[:4]); p.add(fin[rs16 + 2:]); p.add(ow(2)[4:]); p.add(lx)
    p.barrier()
    pr.stamp()
    p(f'''
    ds_read_b128 v[16:19], v7 offset:{K2_LST}
    ds_read_b128 v[20:23], v7 offset:{K2_LST + 1024}
    ds_read_b128 v[24:27], v{LRD} offset:{K2_LST}
    ''')
    T0 = 32; NT = 8
    rd = [(sg, j) for j in range(8) for sg in range(3)]
    for n in range(NT): p(f'ds_read_b128 {vr(T0 + 4*n, 4)}, v{ORD} offset:{rd[n][0]*8192 + rd[n][1]*1024}')
    p(f'''
    v_max3_f32 v16, v16, v17, v18
    v_max3_f32 v20, v20, v21, v22
    v_max3_f32 v16, v16, v19, v23
    v_max_f32 v16, v16, v20
    v_cmp_lt_f32 vcc, {fhex(LIMIT)}, v16
    v_add_f32 v24, v24, v25
    v_add_f32 v26, v26, v27
    s_cmp_eq_u32 s36, 0
    s_cselect_b64 s[30:31], vcc, 0
    s_cmp_lg_u64 s[30:31], 0
    s_cbranch_scc1 K2_FB
    v_add_f32 v24, v24, v26
    v_rcp_f32 v24, v24
    v_mul_f32 v24, {fhex(-KSC)}, v24
    ''')
    for n, (sg, j) in enumerate(rd):
        for r in range(4): p(f'v_add_f32 v{O3 + 4*j + r}, v{O3 + 4*j + r}, v{T0 + 4*(n % NT) + r}')
        if n + NT < len(rd): p(f'ds_read_b128 {vr(T0 + 4*(n % NT), 4)}, v{ORD} offset:{rd[n+NT][0]*8192 + rd[n+NT][1]*1024}')
    for a in range(4):
        for k in range(8):
            r = O3 + 16*(k // 4) + 4*(k % 4) + a
            p(f'v_mul_f32 v{r}, v{r}, v24')
        for k in range(4):
            r = O3 + 16*(k // 2) + 8*(k % 2) + a
            p(f'v_cvt_pk_bf16_f32 v{T0 + 4*a + k}, v{r}, v{r + 4}')
        p(f'buffer_store_dwordx4 {vr(T0 + 4*a, 4)}, v15, s[20:23], s37 offen offset:{a*128}')
    pr.end()
    p('K2_END:')
    p('s_endpgm')

    p('K2_FB:')
    p('s_mov_b32 s36, 1')
    p('s_mov_b32 s28, 0')
    p('v_lshl_add_u32 v8, v1, 12, v7')
    p('v_add_u32 v8, 4096, v8')
    for t in range(4): p(f'v_sub_f32 v{L + t}, 0, v{C + 16*t}')
    p('K2_FBL:')
    for s in range(4): p(f'buffer_load_dwordx4 {KA(0, s)}, v8, s[12:15], s28 offen offset:{s*1024}')
    for t in range(4):
        p.add(qk(0, t, S[t % 2], '0'))
        for k in range(0, 16, 2): p(f'v_max3_f32 v{L + t}, v{L + t}, v{S[t % 2] + k}, v{S[t % 2] + k + 1}')
    p(f'''
    s_add_u32 s28, s28, 16384
    s_cmp_lt_u32 s28, {31*16384}
    s_cbranch_scc1 K2_FBL
    v_permlane32_swap_b32 v{L}, v{L+1}
    v_permlane32_swap_b32 v{L+2}, v{L+3}
    v_max_f32 v{L}, v{L}, v{L+1}
    v_max_f32 v{L+2}, v{L+2}, v{L+3}
    ''')
    p.barrier()
    p(f'ds_write_b32 v9, v{L} offset:{K2_LST}')
    p(f'ds_write_b32 v14, v{L+2} offset:{K2_LST}')
    p.barrier()
    ld0(); ld1(); ld2()
    for t in range(4):
        p(f's_add_u32 s30, s3, {t+1}')
        p(f's_and_b32 s30, s30, 3')
        p(f's_lshl_b32 s30, s30, 9')
        p(f'v_lshl_add_u32 v16, v5, 4, s30')
        p(f'ds_read_b128 v[20:23], v16 offset:{K2_LST}')
        p(f'v_max3_f32 v20, v20, v21, v22')
        p(f'v_min_f32_e64 v20, -v20, -v23')
        for r in range(16): p(f'v_mov_b32 v{C + 16*t + r}, v20')
    p.barrier()
    p.add(zero())
    p.add(qk(1, 3, S[1], vr(C + 48, 16)))
    p('s_nop 7')
    p('s_branch K2_MAIN')
    p.cfgs = [{}, {'K2_END': [True]}, {'K2_FB': [True, False]}]
    return p

if __name__ == '__main__':
    p = gen_k2(); t = p.emit(); print(p.stats()); print(len(t.split('\n')))
    open('k2.txt', 'w').write(t)
```

```python
from gen_common import *

L_ATT = 0
L_LN2 = 24576
L_CV = 49152
L_ST = 69632
L_DW = 75776
L_H = 83968
K3_LDS = L_H + 65536
SH = 112
SC = 80

class Delay:
    def __init__(self, c): self.c = c

def gen_k3(prof=False, R=64, lamin=16, n0=20, grp=2, lat=700, ahead=64, xcd=True, st=''):
    p = Prog('k3'); pr = Prof(p, prof, 2); p.align = False
    Z = lambda mt, pp, u: 16 + 16*mt + 8*pp + 4*u
    X1 = 64; SEL = 88; FR = 96; AC = 192; T = 240
    VW = 8; M = [9, 10, 11]; VDW = 12; VH = 13; VST = 14; VRS = 15; VMK = 5; VTR = 6
    WE = 64; WD = 72
    pr.start()
    p('''
    s_cmp_ge_u32 s2, 250
    s_cbranch_scc1 K3_END
    s_load_dwordx2 s[4:5], s[0:1], 96
    s_load_dwordx2 s[6:7], s[0:1], 48
    s_load_dwordx2 s[8:9], s[0:1], 80
    v_lshrrev_b32 v1, 6, v0
    v_and_b32 v2, 63, v0
    v_readfirstlane_b32 s3, v1
    v_and_b32 v3, 15, v2
    v_lshrrev_b32 v4, 4, v2
    v_lshlrev_b32 v7, 4, v2
    ''')
    if xcd:
        p('''
        s_and_b32 s10, s2, 7
        s_min_u32 s11, s10, 2
        s_mul_i32 s10, s10, 31
        s_add_u32 s10, s10, s11
        s_lshr_b32 s11, s2, 3
        s_add_u32 s10, s10, s11
        ''')
    else: p('s_mov_b32 s10, s2')
    p('''
    s_cmp_ge_u32 s10, 125
    s_cselect_b32 s11, 125, 0
    s_sub_u32 s11, s10, s11
    s_lshl_b32 s12, s10, 14
    s_cmp_eq_u32 s11, 0
    s_cselect_b32 s13, 0, -4096
    s_cselect_b32 s16, 0, -1
    s_cmp_eq_u32 s11, 124
    s_cselect_b32 s14, 3, 4
    s_cselect_b32 s17, 0, -1
    s_lshl_b32 s14, s14, 12
    v_and_b32 v5, 7, v3
    v_lshlrev_b32 v5, 4, v5
    v_lshl_add_u32 v5, v4, 7, v5
    v_lshl_add_u32 v5, v1, 10, v5
    v_add_u32 v5, s12, v5
    v_lshrrev_b32 v6, 3, v3
    v_lshl_add_u32 v9, v6, 12, v5
    v_add_u32 v10, 8192, v9
    v_mov_b32 v11, s13
    v_mov_b32 v12, s14
    v_cmp_gt_u32 vcc, 8, v3
    v_cndmask_b32 v11, v12, v11, vcc
    v_add_u32 v11, v11, v5
    v_lshrrev_b32 v12, 3, v2
    v_and_b32 v13, 7, v2
    v_lshlrev_b32 v13, 4, v13
    v_lshl_add_u32 v13, v1, 7, v13
    v_add_u32 v14, 8, v12
    v_min_u32 v14, 14, v14
    v_lshl_add_u32 v12, v12, 9, v13
    v_lshl_add_u32 v13, v14, 9, v13
    s_lshl_b32 s18, s3, 11
    s_mul_i32 s19, s3, %d
    ''' % WP_STREAM)
    p(f'''
    s_add_u32 s20, s4, {WS_ATT}
    s_addc_u32 s21, s5, 0
    s_add_u32 s22, s4, {WS_WP}
    s_addc_u32 s23, s5, 0
    s_add_u32 m0, s18, {L_ATT}
    v_add_u32 v{VW}, s19, v7
    ''')
    for mt in range(3):
        for pp in range(2):
            p(f'global_load_lds_dwordx4 v{M[mt]}, s[20:21] offset:{pp*512}', tag='att')
            if (mt, pp) != (2, 1): p(f's_add_u32 m0, m0, {512 if pp == 0 else 8192 - 512}')
    order = list(range(32))
    for q in range(4):
        for s in range(8):
            for ab in range(2): order.append(32 + 8*s + 4*ab + q)
    order += list(range(96, 384))
    pos = {f: n for n, f in enumerate(order)}
    Wr = lambda f: ar(4*(pos[f] % 64), 4)
    state = {'cur': 4096, 'n': 0}
    p(f'v_add_u32 v{VW}, 4096, v{VW}')
    def load():
        n = state['n']; off = order[n]*1024; out = []
        if not (-4096 <= off - state['cur'] <= 3072):
            new = off + 4096 if not (32 <= n < 96) else (off // 8192)*8192 + 4096
            out.append(Ins(f'v_add_u32 v{VW}, {hex((new - state["cur"]) & 0xffffffff)}, v{VW}')); state['cur'] = new
        out.append(Ins(f'global_load_dwordx4 {ar(4*(n % 64), 4)}, v{VW}, s[22:23] offset:{off - state["cur"]}', tag=f'w{n}'))
        state['n'] = n + 1
        return out
    for n in range(4): p.add(load())
    for mt in range(3):
        for pp in range(2):
            p(f'global_load_dwordx4 {vr(X1 + 8*mt + 4*pp, 4)}, v{M[mt]}, s[4:5] offset:{pp*512}')
    p(f's_add_u32 m0, s18, {L_DW}')
    p(f'global_load_lds_dwordx4 v12, s[6:7]', tag='dw')
    p(f's_add_u32 m0, m0, 1024')
    p(f'global_load_lds_dwordx4 v13, s[6:7]', tag='dw')
    ini = f'''
    v_lshrrev_b32 v12, 2, v3
    v_and_b32 v13, 1, v3
    v_lshlrev_b32 v13, 4, v13
    v_mov_b32 v14, 0x3f80
    v_lshlrev_b32 v13, v13, v14
    v_cmp_eq_u32 vcc, v12, v4
    v_cndmask_b32 v13, 0, v13, vcc
    v_and_b32 v12, 2, v3
    v_cmp_eq_u32 vcc, 0, v12
    v_cndmask_b32 v{SEL+2}, 0, v13, vcc
    v_cndmask_b32 v{SEL+3}, v13, 0, vcc
    v_mov_b32 v{SEL}, 0
    v_mov_b32 v{SEL+1}, 0
    v_mov_b32 v{SEL+4}, 0
    v_mov_b32 v{SEL+5}, 0
    v_cndmask_b32_e64 v{VMK}, 0, -1, s[16:17]
    v_lshlrev_b32 v{VDW}, 1, v2
    v_add_u32 v{VDW}, s18, v{VDW}
    v_add_u32 v{VDW}, {L_DW}, v{VDW}
    v_lshl_add_u32 v{VST}, v1, 2, v7
    v_add_u32 v{VST}, {L_ST}, v{VST}
    v_lshlrev_b32 v{VRS}, 4, v3
    v_add_u32 v{VRS}, {L_ST}, v{VRS}
    v_lshrrev_b32 v{VTR}, 2, v3
    v_lshl_add_u32 v{VTR}, v4, 3, v{VTR}
    v_mul_u32_u24 v{VTR}, {SC}, v{VTR}
    v_and_b32 v9, 3, v3
    v_lshl_add_u32 v{VTR}, v9, 3, v{VTR}
    v_add_u32 v{VTR}, {L_CV}, v{VTR}
    s_lshl_b32 s19, s3, 14
    s_add_u32 s19, s19, {L_H}
    v_lshrrev_b32 v10, 2, v3
    v_lshl_add_u32 v9, v10, 3, v9
    v_mul_u32_u24 v9, {SH}, v9
    v_add_u32 v9, s19, v9
    v_lshl_add_u32 v10, v4, 3, v9
    v_add_u32 v9, 16, v10
    v_mov_b32 v11, 64
    v_cmp_lt_u32 vcc, 31, v2
    v_cndmask_b32 v11, 0, v11, vcc
    v_add_u32 v10, v10, v11
    v_add_u32 v11, s18, v7
    v_add_u32 v{VH}, s19, v7
    '''
    ini = [l.strip() for l in ini.strip().split('\n')]
    lds = [load() for n in range(n0 - 4)]
    p.add(spread(ini, [x for l in lds for x in l]))
    VG, VGH, VF = 9, 10, 11

    B = []
    def e(x):
        if isinstance(x, str):
            for l in x.strip().split('\n'):
                if l.strip(): B.append(Ins(l.strip()))
        elif isinstance(x, list):
            for y in x: e(y)
        else: B.append(x)
    def mf(d, f, b, c=None, swap=False):
        a1, a2 = (vr(b, 4), Wr(f)) if swap else (Wr(f), vr(b, 4))
        i = Ins(f'v_mfma_f32_16x16x32_bf16 {vr(d, 4)}, {a1}, {a2}, {vr(d, 4) if c is None else c}'); i.key = pos[f]; return i
    def wait(*tags):
        i = Ins('s_waitcnt vmcnt(63)'); i.kind = 'tagwait'; i.waittags = set(tags); i.wv = None; return i
    def wgrp(fs): return wait(f'w{max(pos[f] for f in fs)}')
    def barrier():
        e(Ins('s_barrier'))
    def stamp():
        if prof:
            n = pr.n; pr.n += 1; e(f's_memtime s[{70+2*n}:{71+2*n}]')
    def I(l): return [Ins(x) if isinstance(x, str) else x for x in l]

    e(wait('att')); barrier(); stamp()
    F3 = lambda mt, s: FR + 12*s + 4*mt
    rd = lambda s: [f'ds_read_b128 {vr(F3(mt, s), 4)}, v7 offset:{L_ATT + mt*8192 + s*1024}' for mt in range(3)]
    e(rd(0) + rd(1)); e(Delay(100))
    for s in range(8):
        m = [mf(Z(mt, pp, u), 4*s + 2*pp + u, F3(mt, s), '0' if s == 0 else None) for pp in range(2) for u in range(2) for mt in range(3)]
        e(wgrp(range(4*s, 4*s + 4)))
        e(m[:1] + (I(rd(s + 2)) if s < 6 else []) + m[1:])
    for pp in range(2):
        for mt in range(3):
            for u in range(2):
                e(f'v_mfma_f32_16x16x32_bf16 {vr(Z(mt, pp, u), 4)}, {vr(SEL + 2 - 2*u, 4)}, {vr(X1 + 8*mt + 4*pp, 4)}, {vr(Z(mt, pp, u), 4)}')
    stamp()
    def stats(nm, region):
        out = []
        ch = []
        for mt in range(nm):
            z = 16 + 16*mt; a = T + 2*mt; b = a + 1
            c = [f'v_add_f32 v{a}, v{z}, v{z+1}', f'v_mul_f32 v{b}, v{z}, v{z}', f'v_fmac_f32 v{b}, v{z+1}, v{z+1}']
            for k in range(2, 16): c += [f'v_add_f32 v{a}, v{a}, v{z+k}', f'v_fmac_f32 v{b}, v{z+k}, v{z+k}']
            ch.append(c)
        for k in range(len(ch[0])):
            for c in ch: out.append(c[k])
        out += [f'v_permlane32_swap_b32 v{T}, v{T+2}', f'v_permlane32_swap_b32 v{T+1}, v{T+3}']
        if nm == 3: out += [f'v_permlane32_swap_b32 v{T+4}, v{T+5}']
        out += [f'v_add_f32 v{T}, v{T}, v{T+2}', f'v_add_f32 v{T+1}, v{T+1}, v{T+3}']
        if nm == 3: out += [f'v_add_f32 v{T+4}, v{T+4}, v{T+5}', f'v_add_f32 v{T+5}, 0, v{T+4}']
        out += [f'v_permlane16_swap_b32 v{T}, v{T+1}']
        if nm == 3: out += [f'v_permlane16_swap_b32 v{T+4}, v{T+5}']
        out += [f'v_add_f32 v{T}, v{T}, v{T+1}', f'ds_write_b32 v{VST}, v{T} offset:{region}']
        if nm == 3: out += [f'v_add_f32 v{T+4}, v{T+4}, v{T+5}', f'ds_write_b32 v{VST}, v{T+4} offset:{region + 1024}']
        return out
    def rstats(nm, region, base, scale):
        offs = [(0, 256), (512, 768), (1024, 1536)]
        out = []
        for mt in range(nm):
            for k in range(2): out.append(f'ds_read_b128 {vr(base + 8*mt + 4*k, 4)}, v{VRS} offset:{region + offs[mt][k]}')
        out.append(Delay(100))
        ch = []
        for mt in range(nm):
            a = base + 8*mt; b = a + 4; r = T + 2*mt
            ch.append([f'v_add_f32 v{a}, v{a}, v{a+1}', f'v_add_f32 v{b}, v{b}, v{b+1}', f'v_add_f32 v{a+2}, v{a+2}, v{a+3}', f'v_add_f32 v{b+2}, v{b+2}, v{b+3}',
                       f'v_add_f32 v{a}, v{a}, v{a+2}', f'v_add_f32 v{b}, v{b}, v{b+2}',
                       f'v_mul_f32 v{a}, s24, v{a}', f'v_mul_f32 v{a+1}, v{a}, v{a}', f'v_fma_f32 v{b}, v{b}, s24, -v{a+1}',
                       f'v_max_f32 v{b}, 0, v{b}', f'v_add_f32 v{b}, s25, v{b}', f'v_rsq_f32 v{b}, v{b}',
                       f'v_mul_f32 v{r}, {fhex(scale)}, v{b}', f'v_mul_f32_e64 v{r+1}, -v{a}, v{r}'])
        for k in range(len(ch[0])):
            for c in ch: out.append(c[k])
        return out
    def norm(mt, pp, tmp):
        z = Z(mt, pp, 0); r = T + 2*mt
        out = [f'v_fma_f32 v{tmp + k}, v{z + k}, v{r}, v{r+1}' for k in range(8)]
        out += [f'v_cvt_pk_bf16_f32 v{tmp + k}, v{tmp + 2*k}, v{tmp + 2*k + 1}' for k in range(4)]
        return out
    e(f's_mov_b32 s24, {fhex(1/256)}')
    e(f's_mov_b32 s25, {fhex(EPS*KSC*KSC)}')
    e(stats(3, 0))
    e(wait('dw'))
    for q in range(15): e(f'ds_read_u16 v{FR + q}, v{VDW} offset:{q*128}')
    barrier()
    e(rstats(3, 0, AC, LOG2E))
    for mt in range(3):
        for pp in range(2):
            tmp = AC + 8*(2*mt + pp)
            e(norm(mt, pp, tmp))
            e(f'ds_write_b128 v{VF}, {vr(tmp, 4)} offset:{L_LN2 + mt*8192 + pp*1024}')
    e(f'v_lshlrev_b32 v{WD}, 16, v{FR}')
    e(f'v_mov_b32 v{WE + 7}, v{FR + 14}')
    for q in range(7):
        e(f'v_lshl_or_b32 v{WE + q}, v{FR + 2*q + 1}, 16, v{FR + 2*q}')
        e(f'v_lshl_or_b32 v{WD + q + 1}, v{FR + 2*q + 2}, 16, v{FR + 2*q + 1}')
    barrier(); stamp()

    rd = lambda s: [f'ds_read_b128 {vr(F3(mt, s), 4)}, v7 offset:{L_LN2 + mt*8192 + s*1024}' for mt in range(3)]
    PA = lambda q, ab, mt: AC + 24*(q % 2) + 12*ab + 4*mt
    def glu(q):
        out = []
        st_ = []
        for mt in range(3):
            for r in range(4):
                a = PA(q, 0, mt) + r; b = PA(q, 1, mt) + r
                st_.append([f'v_exp_f32 v{b}, v{b}', f'v_add_f32 v{b}, 1.0, v{b}', f'v_rcp_f32 v{b}, v{b}', f'v_mul_f32 v{a}, v{a}, v{b}'])
        for k in range(12 + 3):
            for ph in range(4):
                j = k - ph
                if 0 <= j < 12: out.append(st_[j][ph])
            j = k - 3
            if 0 <= j < 12 and j % 4 == 3:
                mt = j // 4; a = PA(q, 0, mt)
                out += [f'v_cvt_pk_bf16_f32 v{a}, v{a}, v{a+1}', f'v_cvt_pk_bf16_f32 v{a+1}, v{a+2}, v{a+3}']
                if mt == 2: out += [f'v_and_b32 v{a}, v{VMK}, v{a}', f'v_and_b32 v{a+1}, v{VMK}, v{a+1}']
                out.append(f'ds_write_b64 v{VGH if mt == 2 else VG}, {vr(a, 2)} offset:{(32*(q // 2) + 4*(q % 2))*SH + (32*mt if mt < 2 else 0)}')
        return out
    e(rd(0) + rd(1)); e(Delay(100))
    for q in range(4):
        m = []
        for s in range(8):
            fs = [32 + 8*s + 4*ab + q for ab in range(2)]
            if s % 2 == 0: m.append(wgrp(fs + [f + 8 for f in fs]))
            mm = [mf(PA(q, ab, mt), fs[ab], F3(mt, s), '0' if s == 0 else None, swap=True) for ab in range(2) for mt in range(3)]
            if q == 0 and s < 6: mm = mm[:1] + I(rd(s + 2)) + mm[1:]
            m += mm
        if q > 0: m = spread(m, I(glu(q - 1)), 3)
        e(m)
    stamp()
    e(glu(3))
    HX = FR; CO = FR + 32; TE = FR + 64
    e(f'v_mul_u32_u24 v{T}, {SH}, v2')
    e(f'v_add_u32 v{T}, s19, v{T}')
    for k in range(6): e(f'ds_read_b128 {vr(HX + 4*k, 4)}, v{T} offset:{16*k}')
    e(f'v_lshl_add_u32 v{T+1}, v1, 6, v2')
    e(f'v_mul_u32_u24 v{T+1}, {SC}, v{T+1}')
    e(Delay(100))
    def dots(g):
        out = []
        for q in range(8):
            for t in range(4*g, 4*g + 4):
                w = (WE if t % 2 else WD) + q; h = HX + (t + 1)//2 + q
                out.append(f'v_dot2_f32_bf16 v{CO + t}, v{h}, v{w}, 0' if q == 0 else f'v_dot2c_f32_bf16 v{CO + t}, v{h}, v{w}')
        return out
    def csilu(g):
        out = []
        for ph in range(4):
            for t in range(4*g, 4*g + 4):
                x = TE + t % 4
                out.append([f'v_exp_f32 v{x}, v{CO + t}', f'v_fma_f32 v{x}, v{x}, 0.5, 0.5', f'v_rcp_f32 v{x}, v{x}', f'v_mul_f32 v{CO + t}, v{CO + t}, v{x}'][ph])
        o = TE + 4 + 4*((g // 2) % 2) + 2*(g % 2)
        out += [f'v_cvt_pk_bf16_f32 v{o}, v{CO + 4*g}, v{CO + 4*g + 1}', f'v_cvt_pk_bf16_f32 v{o + 1}, v{CO + 4*g + 2}, v{CO + 4*g + 3}']
        if g % 2: out.append(f'ds_write_b128 v{T+1}, {vr(o - 2, 4)} offset:{L_CV + 16*(g // 2)}')
        return out
    for g in range(9):
        d = dots(g) if g < 8 else []
        c = csilu(g - 1) if g > 0 else []
        e(spread(d, c, 2) if d and c else d + c)
    barrier(); stamp()

    F2 = lambda mt, s: FR + 8*s + 4*mt
    rd = lambda s: [f'ds_read_b64_tr_b16 {vr(F2(mt, s) + 2*hf, 2)}, v{VTR} offset:{s*32*SC + hf*4*SC + mt*32}' for mt in range(2) for hf in range(2)]
    e(rd(0) + rd(1)); e(Delay(100))
    for s in range(8):
        m = [mf(Z(mt, pp, u), 96 + 4*s + 2*pp + u, F2(mt, s)) for pp in range(2) for u in range(2) for mt in range(2)]
        e(wgrp(range(96 + 4*s, 100 + 4*s)))
        e(m[:1] + (I(rd(s + 2)) if s < 6 else []) + m[1:])
    stamp()
    e(stats(2, 2048)); barrier()
    e(rstats(2, 2048, AC, LOG2E))
    for mt in range(2):
        for pp in range(2):
            tmp = AC + 8*(2*mt + pp)
            e(norm(mt, pp, tmp))
            e(f'ds_write_b128 v{VF}, {vr(tmp, 4)} offset:{L_ATT + mt*8192 + pp*1024}')
    barrier(); stamp()

    rd = lambda s: [f'ds_read_b128 {vr(F2(mt, s), 4)}, v7 offset:{L_ATT + mt*8192 + s*1024}' for mt in range(2)]
    HA = lambda nb, mt, pp, u: 160 + 32*(nb % 2) + 16*mt + 8*pp + 4*u
    TS = 224
    def silu(nb):
        out = []; st_ = []
        for k in range(32):
            a = HA(nb, 0, 0, 0) + k; x = TS + k % 4
            st_.append([f'v_exp_f32 v{x}, v{a}', f'v_add_f32 v{x}, 1.0, v{x}', f'v_rcp_f32 v{x}, v{x}', f'v_mul_f32 v{a}, v{a}, v{x}'])
        for k in range(32 + 3):
            for ph in range(4):
                j = k - ph
                if 0 <= j < 32: out.append(st_[j][ph])
            j = k - 3
            if 0 <= j < 32 and j % 2 == 1:
                a = HA(nb, 0, 0, 0); o = TS + 4 + 4*((j // 8) % 2)
                out.append(f'v_cvt_pk_bf16_f32 v{o + (j % 8)//2}, v{a + j - 1}, v{a + j}')
                if j % 8 == 7:
                    mt = j // 16; pp = (j // 8) % 2
                    out.append(f'ds_write_b128 v{VH}, {vr(o, 4)} offset:{(2*nb + pp)*2048 + mt*1024}')
        return out
    e(rd(0) + rd(1) + rd(2)); e(Delay(100))
    for nb in range(4):
        m = []
        for s in range(8):
            f0 = 128 + 32*nb + 4*s
            m.append(wgrp(range(f0, f0 + 4)))
            mm = [mf(HA(nb, mt, pp, u), f0 + 2*pp + u, F2(mt, s), '0' if s == 0 else None) for pp in range(2) for u in range(2) for mt in range(2)]
            if nb == 0 and s < 5: mm = mm[:1] + I(rd(s + 3)) + mm[1:]
            m += mm
        if nb > 0: m = spread(m, I(silu(nb - 1)), 3)
        e(m)
    stamp()
    e(silu(3))
    e(f'v_add_u32 v{T}, {L_H}, v7')
    barrier(); stamp()
    FH = lambda mt, s: FR + 8*(s % 8) + 4*mt
    rd = lambda s: [f'ds_read_b128 {vr(FH(mt, s), 4)}, v{T} offset:{s*2048 + mt*1024}' for mt in range(2)]
    e(rd(0) + rd(1) + rd(2)); e(Delay(100))
    for s in range(32):
        m = [mf(Z(mt, pp, u), 256 + 4*s + 2*pp + u, FH(mt, s)) for pp in range(2) for u in range(2) for mt in range(2)]
        e(wgrp(range(256 + 4*s, 260 + 4*s)))
        e(m[:1] + (I(rd(s + 3)) if s < 29 else []) + m[1:])
        if s == 28:
            e(f'''
            s_add_u32 s8, s8, s12
            s_addc_u32 s9, s9, 0
            v_lshlrev_b32 v9, 9, v3
            v_lshl_add_u32 v9, v1, 7, v9
            v_lshl_add_u32 v9, v4, 4, v9
            v_add_u32 v10, 8192, v9
            ''')
    stamp()
    e(stats(2, 4096)); barrier()
    e(rstats(2, 4096, AC, -1.0))
    for mt in range(2):
        for pp in range(2):
            tmp = AC + 8*(2*mt + pp)
            e(norm(mt, pp, tmp))
            e(f'global_store_dwordx4 v{9 + mt}, {vr(tmp, 4)}, s[8:9] offset:{pp*64} {st}')

    last = {}
    for k, i in enumerate(B):
        if isinstance(i, Ins) and i.kind == 'mfma' and i.key is not None: last[i.key] = k
    nxt_mfma = [False]*len(B)
    t = n0*R; tm = 0; it = {n: n*R for n in range(n0)}; pipe = n0*R; freed = -1; log = []
    free_at = {k: n for n, k in last.items()}
    maxuse = -1
    for k, i in enumerate(B):
        if isinstance(i, Delay): t += i.c; continue
        if i.kind == 'tagwait':
            for tg in i.waittags:
                if tg[0] == 'w':
                    n = int(tg[1:]); assert n < state['n'], (n, state['n']); t = max(t, it[n] + lat); maxuse = max(maxuse, n)
            t += 4
        elif i.kind == 'mfma': t = max(t, tm + 16); tm = t; t += 8
        elif i.kind == 'barrier': t += 60
        elif i.op in TRANS: t += 8
        else: t += 4
        p.ins.append(i)
        if '_memtime' in i.op: log.append((t, state['n'], maxuse))
        if k in free_at: freed = free_at[k]
        near = any(isinstance(x, Ins) and x.kind == 'mfma' for x in B[k+1:k+7])
        if i.kind == 'mfma' or not near:
            ok = lambda n: n < 384 and n - 64 <= freed and n <= maxuse + 59
            if ok(state['n']) and (t >= pipe - ahead or state['n'] <= maxuse + lamin):
                c = 0
                while ok(state['n']) and c < grp:
                    n = state['n']
                    for x in load(): p.ins.append(x); t += 4
                    pipe = max(pipe, t) + R; it[n] = pipe; t = max(t, pipe - 3*R); c += 1
                if i.kind != 'mfma': t += 8
    assert state['n'] == 384
    p.model = (log, t)
    pr.end()
    p('K3_END:')
    p('s_endpgm')
    p.cfgs = [{}, {'K3_END': [True]}]
    return p

if __name__ == '__main__':
    p = gen_k3(prof=True); t = p.emit(); print(p.stats()); print(len(t.split('\n'))); print(p.model)
    open('k3.txt', 'w').write(t)
```

```python
import sys, importlib
from gen_common import *
NAME = 'standalone__conformer_family_zipformer__speech'
HDR = open('cdna_kernels/%s.s.ref' % NAME).read().split('; Override launch')[0]
def make(which='123', **kw):
    ks = []
    if '1' in which:
        import gen_k1; ks.append(('zf_k1_kernel', gen_k1.gen_k1(**kw.get('k1', {})), 256, 256, gen_k1.K1_LDS))
    if '2' in which:
        import gen_k2; ks.append(('zf_k2_kernel', gen_k2.gen_k2(**kw.get('k2', {})), 256, 256, gen_k2.K2_LDS))
    if '3' in which:
        import gen_k3; k3 = gen_k3.gen_k3(**kw.get('k3', {})); ks.append(('zf_k3_kernel', k3, k3.grid, 256, gen_k3.K3_LDS))
    t = HDR
    for n, p, g, b, lds in ks: t += f'; @launch kernel={n} grid=({g},1,1) block=({b},1,1) lds={lds}\n'
    t += '.amdgcn_target "amdgcn-amd-amdhsa--gfx950"\n.text\n'
    for n, p, g, b, lds in ks:
        t += kernel_text(n, p.emit())
        print(n, p.stats(), file=sys.stderr)
    t += '.section .rodata,"a"\n'
    for n, p, g, b, lds in ks: t += kernel_desc(n)
    return t
if __name__ == '__main__':
    which = sys.argv[1] if len(sys.argv) > 1 else '123'
    out = sys.argv[2] if len(sys.argv) > 2 else 'cdna_kernels/%s.s' % NAME
    pf = {'prof': True} if len(sys.argv) > 3 else {}
    open(out, 'w').write(make(which, k1=pf, k2=pf, k3=pf))
```

```python
from gen_common import *

K1_LDS_A = 0
K1_LDS_B = 16896
K1_LDS_C = 33792
K1_LDS_ST = 50688
K1_LDS_RED = 51712
K1_LDS = K1_LDS_RED + 98304
R1 = 5
RING = 256 - 32 * R1

def gen_k1(prof=False, stx='', stq='', stw=''):
    p = Prog('k1'); pr = Prof(p, prof, 0)
    pr.start()
    S_X, S_W1, S_W2, S_WQ, S_WS = 20, 24, 28, 32, 36
    SEL_LO, SEL_HI, MASK = 40, 41, 42
    p('''
    s_cmp_ge_u32 s2, 256
    s_cbranch_scc1 K1_END
    s_load_dwordx8 s[8:15], s[0:1], 0
    s_load_dwordx2 s[16:17], s[0:1], 96
    v_lshrrev_b32 v1, 6, v0
    v_and_b32 v2, 63, v0
    v_readfirstlane_b32 s3, v1
    v_and_b32 v3, 15, v2
    v_lshrrev_b32 v4, 4, v2
    v_and_b32 v5, 31, v2
    v_lshrrev_b32 v6, 5, v2
    v_lshlrev_b32 v7, 4, v2
    s_mov_b32 s40, 0x05040100
    s_mov_b32 s41, 0x07060302
    s_mov_b32 s42, 0xffff0000
    s_mov_b32 s44, 4096
    s_mov_b32 s45, 8192
    s_mov_b32 s46, 12288
    s_mov_b32 s47, 4608
    s_mov_b32 s48, 9216
    s_lshl_b32 s4, s2, 14
    s_lshr_b32 s5, s2, 3
    s_lshl_b32 s5, s5, 2
    s_add_u32 s5, s5, s3
    s_mul_i32 s6, s5, 3072
    s_lshl_b32 s5, s5, 12
    ''')
    p('''
    v_lshl_add_u32 v8, v1, 3, v4
    v_lshlrev_b32 v9, 4, v8
    v_lshlrev_b32 v8, 9, v8
    v_lshl_add_u32 v8, v3, 4, v8
    v_mul_u32_u24 v10, 528, v3
    v_add_u32 v9, v9, v10
    ''')
    p('''
    v_lshlrev_b32 v10, 14, v6
    v_lshl_add_u32 v10, v1, 9, v10
    v_lshl_add_u32 v10, v5, 4, v10
    ''')
    srd_off(p, S_X, 8, 9, 's4', 16384)
    p('s_cmp_ge_u32 s2, 250')
    p('s_cselect_b32 s22, 0, s22')
    XR = 64
    for rg in range(2):
        for hf in range(2):
            p(f'buffer_load_dwordx4 {vr(XR + 8*rg + 4*hf, 4)}, v8, s[20:23], 0 offen offset:{rg*2048 + hf*256}')
    srd(p, S_W1, 10, 11, 524288)
    srd(p, S_W2, 12, 13, 524288)
    srd(p, S_WQ, 14, 15, 393216)
    for q in range(4): p(f'buffer_load_dwordx4 {ar(128 + 4*q, 4)}, v7, s[24:27], s5 offen offset:{q*1024}')
    for q in range(4): p(f'buffer_load_dwordx4 {ar(144 + 4*q, 4)}, v7, s[28:31], s5 offen offset:{q*1024}')
    for q in range(3): p(f'buffer_load_dwordx4 {ar(160 + 4*q, 4)}, v7, s[32:35], s6 offen offset:{q*1024}')
    p('s_cmp_ge_u32 s2, 250')
    p('s_cbranch_scc1 K1_PRE', key='pre')
    srd(p, S_WS, 16, 17, WS_WP)

    V_W1, V_W2, V_WQ = 10, 11, 12
    def loads(G):
        slot = RING + 32 * (G % R1); out = []
        if G < 16:
            for e in range(8):
                so = ['0', 's44', 's45', 's46'][e // 2]
                out.append(f'buffer_load_dwordx4 {vr(slot + 4*e, 4)}, v{V_W1}, s[24:27], {so} offen offset:{(e % 2)*2048}')
            if G < 15: out.append(f'v_add_u32 v{V_W1}, 32768, v{V_W1}')
        elif G < 32:
            r = G - 16
            for e in range(8):
                out.append(f'buffer_load_dwordx4 {vr(slot + 4*e, 4)}, v{V_W2}, s[28:31], 0 offen offset:{e*512}')
            if r < 15: out.append(f'v_add_u32 v{V_W2}, {4096 if r % 4 < 3 else 32768 - 3*4096}, v{V_W2}')
        elif G < 48:
            for e in range(8):
                so = ['0', 's47', 's48'][e // 3]
                out.append(f'buffer_load_dwordx4 {vr(slot + 4*e, 4)}, v{V_WQ}, s[32:35], {so} offen offset:{(e % 3)*1536}')
            if G < 47: out.append(f'v_add_u32 v{V_WQ}, {16*1536}, v{V_WQ}')
        return out
    p('''
    v_lshl_add_u32 v11, v1, 3, v5
    v_and_b32 v11, 31, v11
    v_lshlrev_b32 v11, 4, v11
    v_lshl_add_u32 v11, v6, 14, v11
    v_lshl_add_u32 v11, v1, 17, v11
    v_mul_u32_u24 v12, 12288, v6
    v_lshl_add_u32 v12, v1, 9, v12
    v_lshl_add_u32 v12, v5, 4, v12
    ''')
    for G in range(R1): p.add(loads(G))
    p('s_cmp_eq_u32 s3, 3')
    p('s_cselect_b32 s34, 0, s34')
    p('''
    v_mul_u32_u24 v13, 528, v6
    v_lshl_add_u32 v13, v5, 4, v13
    ''')
    F = [16, 32]
    for rg in range(2):
        for hf in range(2):
            p(f'ds_write_b128 v9, {vr(XR + 8*rg + 4*hf, 4)} offset:{K1_LDS_B + hf*16*528 + rg*64}')
    seq = [[], []]
    for rg in range(2):
        s = seq[rg]; f = F[rg]; t = 48 + 2*rg
        for k in range(8):
            s.append(f'v_lshlrev_b32 v{f + 2*k}, 16, v{XR + 8*rg + k}')
            s.append(f'v_and_b32 v{f + 2*k + 1}, s42, v{XR + 8*rg + k}')
        s.append(f'v_add_f32 v{t}, v{f}, v{f+1}')
        for k in range(2, 16): s.append(f'v_add_f32 v{t}, v{t}, v{f+k}')
        for sh in (8, 4, 2, 1): s.append(f'v_add_f32_dpp v{t}, v{t}, v{t} row_ror:{sh} row_mask:0xf bank_mask:0xf')
        s.append(f'v_mul_f32 v{t}, {fhex(1/256)}, v{t}')
        for k in range(16): s.append(f'v_sub_f32 v{f+k}, v{f+k}, v{t}')
        s.append(f'v_mul_f32 v{t}, v{f}, v{f}')
        for k in range(1, 16): s.append(f'v_fmac_f32 v{t}, v{f+k}, v{f+k}')
        for sh in (8, 4, 2, 1): s.append(f'v_add_f32_dpp v{t}, v{t}, v{t} row_ror:{sh} row_mask:0xf bank_mask:0xf')
        s.append(f'v_mov_b32 v{t+1}, {fhex(EPS)}')
        s.append(f'v_fmac_f32 v{t+1}, {fhex(1/256)}, v{t}')
        s.append(f'v_rsq_f32 v{t}, v{t+1}')
        s.append(f'v_mul_f32 v{t}, {fhex(-LOG2E)}, v{t}')
        for k in range(16): s.append(f'v_mul_f32 v{f+k}, v{f+k}, v{t}')
        for k in range(8): s.append(f'v_cvt_pk_bf16_f32 v{f+k}, v{f+2*k}, v{f+2*k+1}')
        for hf in range(2):
            s.append(f'ds_write_b128 v9, {vr(f + 4*hf, 4)} offset:{K1_LDS_A + hf*16*528 + rg*64}')
    for a, b in zip(*seq): p(a); p(b)
    pr.stamp()
    p.barrier()
    pr.stamp()

    OP = [16, 24]
    BF = [32, 36]
    def perms(G, q):
        slot = RING + 32 * (G % R1); o = OP[q % 2]; out = []
        for e2 in range(4):
            a = slot + 8*e2 + q; b = a + 4
            out.append(f'v_perm_b32 v{o + e2}, v{b}, v{a}, s40')
            out.append(f'v_perm_b32 v{o + 4 + e2}, v{b}, v{a}, s41')
        return out
    def mfmas(q, acc, B, first, swap=False):
        o = OP[q % 2]; out = []
        for u in range(2):
            d = ar(acc + 16*(2*q + u), 16); w = vr(o + 4*u, 4); b = vr(B, 4)
            a1, a2 = (b, w) if swap else (w, b)
            out.append(f'v_mfma_f32_32x32x16_bf16 {d}, {a1}, {a2}, {"0" if first else d}')
        return out
    def step(G, pend, acc, B, first, side, swap=False, ld=True):
        body = []
        for q in range(4):
            pm = perms(G, q)
            m = pend if q == 0 else mfmas(q - 1, acc, B, first, swap)
            blk = list(pm)
            if m: blk = blk[:2] + [m[0]] + blk[2:6] + [m[1]] + blk[6:]
            body += blk
        lds = loads(G - 1 + R1) if (ld and G >= 1) else []
        body = spread(body, lds, 1)
        body = spread(body, side, 2)
        return body, mfmas(3, acc, B, first, swap)

    p(f'ds_read_b128 {vr(BF[0], 4)}, v13 offset:{K1_LDS_A}')
    pend = []
    for s in range(16):
        side = [f'ds_read_b128 {vr(BF[(s+1) % 2], 4)}, v13 offset:{K1_LDS_A + (s+1)*1056}'] if s < 15 else []
        body, pend2 = step(s, pend, 0, BF[s % 2], s == 0, [])
        if side: body = body[:14] + side + body[14:]
        p.add(body); pend = pend2
    HT = 40
    HF = [56, 60]
    def silu(r):
        out = []; t = lambda j: HT + j; e = lambda j: HT + 8 + j
        st = [[f'v_accvgpr_read_b32 v{t(j)}, a{16*j + r}',
               f'v_exp_f32 v{e(j)}, v{t(j)}',
               f'v_add_f32 v{e(j)}, 1.0, v{e(j)}',
               f'v_rcp_f32 v{e(j)}, v{e(j)}',
               f'v_mul_f32 v{t(j)}, v{t(j)}, v{e(j)}'] for j in range(8)]
        for k in range(8 + 4):
            for ph in range(5):
                j = k - ph
                if 0 <= j < 8: out.append(st[j][ph])
            j = k - 4
            if 0 <= j < 8 and j % 2 == 1:
                out.append(f'v_cvt_pk_bf16_f32 v{HF[r % 2] + j//2}, v{t(j-1)}, v{t(j)}')
        return out
    pr.stamp()
    p.add(pend); pend = []
    p.add(weave(silu(0), loads(15 + R1), 0, 4))
    for r in range(16):
        side = silu(r + 1) if r < 15 else []
        G = 16 + r
        body, pend2 = step(G, pend, 128, HF[r % 2], r == 0, [], ld=(r > 0))
        body = spread(body, side, 8)
        p.add(body); pend = pend2
    p.add(pend)
    pr.stamp()
    AD = 44
    for rho in range(1, 4):
        p(f's_add_u32 s4, s3, {rho}')
        p(f's_and_b32 s4, s4, 3')
        p(f's_mul_i32 s4, s4, 24576')
        p(f's_add_u32 s4, s4, {K1_LDS_RED + (rho-1)*8192}')
        p(f'v_add_u32 v{AD + rho}, s4, v7')
    p(f's_mul_i32 s4, s3, 24576')
    p(f's_add_u32 s4, s4, {K1_LDS_RED}')
    p(f'v_add_u32 v{AD}, s4, v7')
    lds = loads(31 + R1)
    wr = []
    for j in range(8):
        for rho in range(1, 4):
            wr.append(f'ds_write_b128 v{AD + rho}, {ar(128 + 16*j + 4*rho, 4)} offset:{j*1024}')
    Y = 48
    own = [f'v_accvgpr_read_b32 v{Y + 4*j + rr}, a{128 + 16*j + rr}' for j in range(8) for rr in range(4)]
    p('''
    v_lshl_add_u32 v14, v1, 1, v6
    v_mul_u32_u24 v14, 2112, v14
    v_lshl_add_u32 v14, v5, 4, v14
    ''')
    X = 80
    xr = [f'ds_read_b128 {vr(X + 4*rr, 4)}, v14 offset:{K1_LDS_B + rr*528}' for rr in range(4)]
    p.add(xr)
    p.add(spread(spread(wr, lds), own, 3))
    p.barrier()
    pr.stamp()
    T = 16
    rd = [(sl, j) for j in range(8) for sl in range(3)]
    NT = 7
    for n in range(NT): p(f'ds_read_b128 {vr(T + 4*n, 4)}, v{AD} offset:{rd[n][0]*8192 + rd[n][1]*1024}')
    for n, (sl, j) in enumerate(rd):
        for rr in range(4): p(f'v_add_f32 v{Y + 4*j + rr}, v{Y + 4*j + rr}, v{T + 4*(n % NT) + rr}')
        if n + NT < len(rd):
            p(f'ds_read_b128 {vr(T + 4*(n % NT), 4)}, v{AD} offset:{rd[n+NT][0]*8192 + rd[n+NT][1]*1024}')
    p(f's_mov_b32 s4, {fhex(-KSC)}')
    SUM, SQ = 16, 17
    for rr in range(4):
        for k in range(4):
            p(f'v_lshlrev_b32 v18, 16, v{X + 4*rr + k}')
            p(f'v_and_b32 v19, s42, v{X + 4*rr + k}')
            a, b = Y + 4*(2*k) + rr, Y + 4*(2*k+1) + rr
            p(f'v_fmac_f32 v{a}, s4, v18')
            p(f'v_fmac_f32 v{b}, s4, v19')
            if rr == 0 and k == 0:
                p(f'v_add_f32 v{SUM}, v{a}, v{b}')
                p(f'v_mul_f32 v{SQ}, v{a}, v{a}')
            else:
                p(f'v_add_f32 v{SUM}, v{SUM}, v{a}')
                p(f'v_fmac_f32 v{SQ}, v{a}, v{a}')
                p(f'v_add_f32 v{SUM}, v{SUM}, v{b}')
            p(f'v_fmac_f32 v{SQ}, v{b}, v{b}')
    p(f'''
    v_permlane32_swap_b32 v{SUM}, v{SQ}
    v_lshl_add_u32 v18, v1, 2, v7
    v_add_f32 v{SUM}, v{SUM}, v{SQ}
    ds_write_b32 v18, v{SUM} offset:{K1_LDS_ST}
    ''')
    PK = 80
    p('''
    v_lshrrev_b32 v20, 3, v5
    v_lshlrev_b32 v20, 12, v20
    v_and_b32 v21, 7, v5
    v_lshl_add_u32 v20, v21, 4, v20
    v_lshl_add_u32 v21, v1, 1, v6
    v_lshl_add_u32 v20, v21, 9, v20
    s_lshl_b32 s4, s2, 14
    ''')
    p.barrier()
    p(f'v_lshlrev_b32 v19, 4, v5')
    p(f'ds_read_b128 v[24:27], v19 offset:{K1_LDS_ST}')
    p(f'ds_read_b128 v[28:31], v19 offset:{K1_LDS_ST + 512}')
    for rr in range(4):
        for k in range(4):
            p(f'v_cvt_pk_bf16_f32 v{PK + 4*rr + k}, v{Y + 4*(2*k) + rr}, v{Y + 4*(2*k+1) + rr}')
        p(f'buffer_store_dwordx4 {vr(PK + 4*rr, 4)}, v20, s[36:39], s4 offen offset:{rr*128} {stx}')
    p(f'''
    v_add_f32 v24, v24, v25
    v_add_f32 v28, v28, v29
    v_add_f32 v26, v26, v27
    v_add_f32 v30, v30, v31
    v_add_f32 v24, v24, v26
    v_add_f32 v28, v28, v30
    v_mul_f32 v24, {fhex(1/256)}, v24
    v_mul_f32 v25, v24, v24
    v_mov_b32 v26, {fhex(1/256)}
    v_fma_f32 v28, v28, v26, -v25
    v_max_f32 v28, 0, v28
    v_add_f32 v28, {fhex(EPS*KSC*KSC)}, v28
    v_rsq_f32 v28, v28
    v_mul_f32 v26, {fhex(-0.125*LOG2E)}, v28
    v_mul_f32 v25, v24, v28
    v_mul_f32 v27, v24, v26
    ''')
    for rr in range(4):
        for k in range(4):
            a, b = Y + 4*(2*k) + rr, Y + 4*(2*k+1) + rr
            p(f'v_fma_f32 v16, -v{a}, v28, v25')
            p(f'v_fma_f32 v17, -v{b}, v28, v25')
            p(f'v_fma_f32 v18, v{a}, v26, -v27')
            p(f'v_fma_f32 v19, v{b}, v26, -v27')
            p(f'v_cvt_pk_bf16_f32 v{32 + 8*(rr % 2) + k}, v16, v17')
            p(f'v_cvt_pk_bf16_f32 v{36 + 8*(rr % 2) + k}, v18, v19')
        p(f'ds_write_b128 v14, {vr(32 + 8*(rr % 2), 4)} offset:{K1_LDS_A + rr*528}')
        p(f'ds_write_b128 v14, {vr(36 + 8*(rr % 2), 4)} offset:{K1_LDS_C + rr*528}')
    p('''
    s_cmp_ge_u32 s2, 125
    s_cselect_b32 s5, 375, 0
    s_add_u32 s5, s5, s2
    s_lshl_b32 s5, s5, 12
    s_lshl_b32 s6, s3, 22
    s_add_u32 s5, s5, s6
    ''')
    p(f's_add_u32 s50, s5, {WS_Q}')
    for g in range(1, 4): p(f's_add_u32 s{50 + g}, s50, {g*BH_BYTES}')
    p('s_cmp_eq_u32 s3, 0')
    p(f's_cselect_b32 s4, {K1_LDS_C}, {K1_LDS_A}')
    p('v_add_u32 v13, s4, v13')
    p.barrier()
    pr.stamp()
    n0 = pr.n
    p('s_cmp_eq_u32 s3, 3')
    p('s_cbranch_scc1 K1_END', key='w3')
    p('s_cmp_eq_u32 s3, 2')
    p('s_cbranch_scc1 K1_V', key='wv')
    for swap in (False, True):
        if swap: p('K1_V:')
        p(f'ds_read_b128 {vr(BF[0], 4)}, v13')
        pend = []
        for s in range(16):
            G = 32 + s
            body, pend2 = step(G, pend, 0, BF[s % 2], s == 0, [], swap=swap, ld=(s > 0))
            if s < 15: body = body[:14] + [f'ds_read_b128 {vr(BF[(s+1) % 2], 4)}, v13 offset:{(s+1)*1056}'] + body[14:]
            p.add(body); pend = pend2
        p.add(pend)
        pr.n = n0; pr.stamp()
        E = 96
        if not swap:
            n = 0
            for s in range(4):
                for g in range(4):
                    t = E + 8*(n % 8); o = E + 64 + 4*(n % 8); n += 1
                    for u in range(2):
                        for rr in range(4): p(f'v_accvgpr_read_b32 v{t + 4*u + rr}, a{16*(2*s + u) + 4*g + rr}')
                    for k in range(4): p(f'v_cvt_pk_bf16_f32 v{o + k}, v{t + 2*k}, v{t + 2*k + 1}')
                    p(f'buffer_store_dwordx4 {vr(o, 4)}, v7, s[36:39], s{50 + g} offen offset:{s*1024} {stq}')
            pr.end()
            p('s_endpgm')
        else:
            p(f'''
            v_lshrrev_b32 v16, 3, v5
            s_mov_b32 s4, {BH_BYTES}
            v_mul_lo_u32 v16, v16, s4
            v_and_b32 v17, 7, v5
            v_lshl_add_u32 v17, v6, 5, v17
            v_lshl_add_u32 v16, v17, 4, v16
            ''')
            n = 0
            for j in range(8):
                for s in range(2):
                    t = E + 8*(n % 8); o = E + 64 + 4*(n % 8); n += 1
                    for k in range(8): p(f'v_accvgpr_read_b32 v{t + k}, a{16*j + 8*s + k}')
                    for k in range(4): p(f'v_cvt_pk_bf16_f32 v{o + k}, v{t + 2*k}, v{t + 2*k + 1}')
                    p(f'buffer_store_dwordx4 {vr(o, 4)}, v16, s[36:39], s50 offen offset:{((j//4)*2 + s)*1024 + (j % 4)*128} {stq}')
            pr.end()
            p('s_endpgm')

    p('K1_PRE:')
    p('''
    s_load_dwordx4 s[8:11], s[0:1], 32
    s_load_dwordx2 s[12:13], s[0:1], 56
    s_load_dwordx4 s[52:55], s[0:1], 64
    s_sub_u32 s4, s2, 250
    s_lshl_b32 s4, s4, 1
    s_mul_i32 s5, s3, %d
    s_lshl_b32 s6, s4, 15
    s_add_u32 s5, s5, s6
    s_add_u32 s5, s5, %d
    v_lshrrev_b32 v8, 3, v2
    v_and_b32 v9, 7, v2
    v_lshlrev_b32 v9, 4, v9
    s_lshl_b32 s7, s3, 15
    v_and_b32 v10, 3, v2
    v_lshlrev_b32 v10, 4, v10
    v_bfe_u32 v11, v2, 2, 2
    v_lshl_add_u32 v11, v4, 3, v11
    v_lshl_add_u32 v10, v11, 7, v10
    v_add_u32 v10, s7, v10
    s_mov_b32 s27, 0x00020000
    ''' % (WP_STREAM, WS_WP))
    srd(p, S_WS, 16, 17, WS_WP + 4*WP_STREAM)
    p('K1_PB:')
    p('s_waitcnt vmcnt(0)')
    p('''
    s_lshl_b32 s29, s3, 7
    s_mov_b32 s26, 131072
    s_mov_b32 s28, 512
    s_mov_b32 s30, 16384
    s_mov_b32 s31, 32768
    s_mov_b64 s[24:25], s[8:9]
    s_cmp_eq_u32 s4, 0
    s_cbranch_scc1 K1_PGO
    s_mov_b64 s[24:25], s[12:13]
    s_cmp_eq_u32 s4, 3
    s_cbranch_scc1 K1_PGO
    s_cmp_ge_u32 s4, 8
    s_cbranch_scc1 K1_PF2B
    s_cmp_ge_u32 s4, 4
    s_cbranch_scc1 K1_PF2A
    s_mov_b64 s[24:25], s[10:11]
    s_mov_b32 s26, 262144
    s_mov_b32 s28, 1024
    s_mov_b32 s30, 512
    s_sub_u32 s6, s4, 1
    s_lshl_b32 s6, s6, 17
    s_add_u32 s29, s29, s6
    s_branch K1_PGO
    K1_PF2A:
    s_mov_b64 s[24:25], s[52:53]
    s_mov_b32 s26, 524288
    s_mov_b32 s28, 2048
    s_mov_b32 s30, 65536
    s_mov_b32 s31, 131072
    s_lshl_b32 s29, s3, 9
    s_sub_u32 s6, s4, 4
    s_lshl_b32 s6, s6, 7
    s_add_u32 s29, s29, s6
    s_branch K1_PGO
    K1_PF2B:
    s_mov_b64 s[24:25], s[54:55]
    s_mov_b32 s26, 524288
    s_sub_u32 s6, s4, 8
    s_lshl_b32 s6, s6, 17
    s_add_u32 s29, s29, s6
    K1_PGO:
    v_mul_lo_u32 v11, v8, s28
    v_add_u32 v11, v11, v9
    s_lshl_b32 s28, s28, 3
    s_mov_b32 m0, s7
    ''')
    for v in range(8):
        p('s_mov_b32 s6, s29')
        for q in range(4):
            p(f'buffer_load_dwordx4 v11, s[24:27], s6 offen lds', tag=f'pu{v}')
            p(f's_add_u32 m0, m0, 1024')
            if q < 3: p('s_add_u32 s6, s6, s28')
        if v % 2 == 0: p('s_add_u32 s29, s29, s30')
        else:
            p('s_sub_u32 s29, s29, s30'); p('s_add_u32 s29, s29, s31')
    for v in range(8):
        p.waitfor(f'pu{v}')
        b = 16 + 16*(v % 2)
        for pp in range(2):
            for u in range(2):
                for hf in range(2):
                    p(f'ds_read_b64_tr_b16 {vr(b + 8*pp + 4*u + 2*hf, 2)}, v10 offset:{v*4096 + hf*512 + pp*64 + u*8}')
        for f in range(4):
            p(f'buffer_store_dwordx4 {vr(b + 4*f, 4)}, v7, s[36:39], s5 offen offset:{f*1024} {stw}')
        p('s_add_u32 s5, s5, 4096')
    p('''
    s_add_u32 s4, s4, 1
    s_bitcmp1_b32 s4, 0
    s_cbranch_scc1 K1_PB
    ''')
    pr.n = 1; pr.end()
    p('K1_END:')
    p('s_endpgm')
    p.cfgs = [{}, {'wv': [True]}, {'w3': [True]}, {'K1_END': [True]},
              {'pre': [True], 'K1_PB': [True, False], 'K1_PGO': [True, False, True]},
              {'pre': [True], 'K1_PB': [True, False], 'K1_PF2A': [True]},
              {'pre': [True], 'K1_PB': [True, False], 'K1_PF2B': [True]},
              {'pre': [True], 'K1_PB': [True, False]}]
    return p

if __name__ == '__main__':
    p = gen_k1(); t = p.emit(); print(p.stats()); print(len(t.split('\n')))
```

```python
from gen_common import *

K2_LST = 0
K2_LO = 2048
K2_LDS = K2_LO + 98304
LIMIT = 2.0 ** 30

def gen_k2(prof=False, rs16=1, inter=False, nold=False, noexp=False, align=False, wp=(3, 3, 7, 7), px1=True, remap=False, st=''):
    p = Prog('k2'); pr = Prof(p, prof, 1); p.align = align
    QA = lambda t, s: ar(128 + 16*t + 4*s, 4)
    KA = lambda par, s: ar(192 + 16*par + 4*s, 4)
    VA = lambda par, f: ar(224 + 16*par + 4*f, 4)
    S = [16, 32]; P = [48, 56]; E = 64; L = 72; D = 76; SEL = 92; C = 96; O3 = 160
    def OA(t, dt): return vr(O3 + 16*dt, 16) if t == 3 else ar(32*t + 16*dt, 16)
    pr.start()
    p('''
    s_cmp_ge_u32 s2, 256
    s_cbranch_scc1 K2_END
    s_load_dwordx2 s[4:5], s[0:1], 96
    v_lshrrev_b32 v1, 6, v0
    v_and_b32 v2, 63, v0
    v_readfirstlane_b32 s3, v1
    v_lshlrev_b32 v7, 4, v2
    v_and_b32 v5, 31, v2
    v_lshrrev_b32 v6, 5, v2
    ''')
    if remap:
        p('''
        s_and_b32 s6, s2, 4
        s_bfe_u32 s7, s2, 0x20003
        s_add_u32 s6, s6, s7
        s_and_b32 s7, s2, 3
        s_lshl_b32 s7, s7, 3
        s_lshr_b32 s28, s2, 5
        s_add_u32 s7, s7, s28
        ''')
    else:
        p('''
        s_and_b32 s6, s2, 7
        s_lshr_b32 s7, s2, 3
        ''')
    p('''
    s_mul_i32 s28, s6, %d
    v_lshl_add_u32 v8, v1, 12, v7
    v_add_u32 v8, 4096, v8
    s_lshl_b32 s29, s7, 14
    ''' % BH_BYTES)
    for t in range(4):
        p(f's_add_u32 s{32+t}, s3, {t+1}')
        p(f's_and_b32 s{32+t}, s{32+t}, 3')
        p(f's_lshl_b32 s{32+t}, s{32+t}, 12')
        p(f's_add_u32 s{32+t}, s{32+t}, s29')
    p(f's_add_u32 s30, s28, {WS_K}'); srd_off(p, 12, 4, 5, 's30', BH_BYTES)
    p(f's_add_u32 s30, s28, {WS_Q}'); srd_off(p, 8, 4, 5, 's30', BH_BYTES)
    p(f's_add_u32 s30, s28, {WS_V}'); srd_off(p, 16, 4, 5, 's30', BH_BYTES)
    p('s_add_u32 s40, s12, 16384')
    p('s_addc_u32 s41, s13, 0')
    p('s_mov_b64 s[42:43], s[16:17]')
    def ldq(t): return [f'buffer_load_dwordx4 {QA(t, s)}, v7, s[8:11], s{32+t} offen offset:{s*1024}' for s in range(4)]
    def ld0():
        for s in range(4): p(f'buffer_load_dwordx4 {KA(1, s)}, v7, s[12:15], 0 offen offset:{s*1024}', tag='K1')
    def ld1():
        for s in range(4): p(f'buffer_load_dwordx4 {KA(0, s)}, v8, s[12:15], 0 offen offset:{s*1024}', tag='K0')
    def ld2():
        for s in range(4): p(f'buffer_load_dwordx4 {VA(1, s)}, v7, s[16:19], 0 offen offset:{s*1024}', tag='V1')
        for s in range(4): p(f'buffer_load_dwordx4 {VA(0, s)}, v8, s[16:19], 0 offen offset:{s*1024}', tag='V0')
    ld0(); p.add(ldq(3) + ldq(0)); ld1(); p.add(ldq(1) + ldq(2)); ld2()
    p('s_lshr_b32 s30, s2, %d' % (5 if remap else 3))
    p('''
    s_lshl_b32 s30, s30, 14
    v_lshlrev_b32 v9, 6, v2
    v_lshl_add_u32 v9, v1, 12, v9
    buffer_load_dword v10, v9, s[12:15], s30 offen
    buffer_load_dword v11, v9, s[16:19], s30 offen
    v_lshlrev_b32 v9, 7, v2
    s_lshr_b32 s30, s2, 3
    s_lshl_b32 s30, s30, 2
    s_add_u32 s30, s30, s3
    s_mul_i32 s30, s30, 12288
    ''')
    srd_off(p, 24, 4, 5, WS_WP, 4*WP_STREAM)
    p('''
    s_add_u32 s31, s30, 8192
    buffer_load_dword v12, v9, s[24:27], s30 offen
    buffer_load_dword v13, v9, s[24:27], s31 offen
    s_mov_b32 s36, 0
    ''')
    def zero():
        out = [f'v_accvgpr_write_b32 a{r}, 0' for r in range(96)] + [f'v_mov_b32 v{O3 + r}, 0' for r in range(32)]
        out += [f'v_mov_b32 v{L + t}, 0' for t in range(4)]
        if rs16: out += [f'v_mov_b32 v{D + r}, 0' for r in range(16)]
        return out
    p.add(zero())
    if rs16:
        p(f'''
        v_lshrrev_b32 v14, 2, v2
        v_lshrrev_b32 v15, 4, v2
        v_xor_b32 v14, v14, v15
        v_and_b32 v14, 1, v14
        v_add_u32 v14, -1, v14
        v_and_b32 v{SEL}, 0x3f803f80, v14
        ''')
        for k in range(1, 4): p(f'v_mov_b32 v{SEL+k}, v{SEL}')
    p(f'''
    v_add_u32 v9, s3, v6
    v_add_u32 v14, 3, v9
    v_add_u32 v9, 1, v9
    v_and_b32 v9, 3, v9
    v_and_b32 v14, 3, v14
    v_lshlrev_b32 v15, 4, v5
    v_lshl_add_u32 v15, v1, 2, v15
    v_lshl_add_u32 v9, v9, 9, v15
    v_lshl_add_u32 v14, v14, 9, v15
    v_lshrrev_b32 v15, 3, v5
    v_lshlrev_b32 v15, 12, v15
    v_and_b32 v3, 7, v5
    v_lshl_add_u32 v15, v3, 4, v15
    v_lshl_add_u32 v15, v6, 9, v15
    ''')
    OW = [192, 193, 194]; ORD = 195; LRD = 196
    for t in range(3):
        p(f's_add_u32 s30, s3, {t+1}')
        p(f's_and_b32 s30, s30, 3')
        p(f's_mul_i32 s30, s30, 24576')
        p(f's_add_u32 s30, s30, {K2_LO + t*8192}')
        p(f'v_add_u32 v{OW[t]}, s30, v7')
    p(f'''
    s_mul_i32 s30, s3, 24576
    s_add_u32 s30, s30, {K2_LO}
    v_add_u32 v{ORD}, s30, v7
    v_lshlrev_b32 v{LRD}, 4, v5
    v_lshl_add_u32 v{LRD}, v1, 9, v{LRD}
    s_lshr_b32 s30, s6, 2
    s_mul_i32 s30, s30, {500*4096}
    s_lshl_b32 s31, s7, 2
    s_add_u32 s31, s31, s3
    s_lshl_b32 s37, s31, 14
    s_add_u32 s37, s37, s30
    s_and_b32 s30, s6, 3
    s_lshl_b32 s30, s30, 10
    s_add_u32 s37, s37, s30
    ''')
    srd_off(p, 20, 4, 5, WS_ATT, 8000*512)
    p('s_cmp_ge_u32 s31, 125')
    p('s_cselect_b32 s22, 0, s22')
    pr.stamp()

    def qk(par, t, dst, c):
        return [f'v_mfma_f32_32x32x16_bf16 {vr(dst, 16)}, {KA(par, s)}, {QA(t, s)}, {c if s == 0 else vr(dst, 16)}' for s in range(4)]
    def pv(par, t, pb):
        return [f'v_mfma_f32_32x32x16_bf16 {OA(t, dt)}, {VA(par, 2*dt + s)}, {vr(pb + 4*s, 4)}, {OA(t, dt)}' for s in range(2) for dt in range(2)]
    def rowmax(src, m):
        out = [f'v_max3_f32 v{m}, v{src}, v{src+1}, v{src+2}']
        for k in range(3, 15, 2): out.append(f'v_max3_f32 v{m}, v{m}, v{src+k}, v{src+k+1}')
        out.append(f'v_max_f32 v{m}, v{m}, v{src+15}')
        return out
    def negmax(m):
        return [f'v_mov_b32 v{m+1}, v{m}', f'v_permlane32_swap_b32 v{m}, v{m+1}', f'v_min_f32_e64 v{m}, -v{m}, -v{m+1}']
    order = [3, 0, 1, 2]
    mm = []
    for t in order: mm += qk(1, t, C + 16*t, '0')
    va = []
    for t in order:
        m = E + 2*(t % 2)
        v = rowmax(C + 16*t, m) + negmax(m)
        if t == 3: v += [f'v_add_f32 v{S[1] + r}, v{C + 48 + r}, v{m}' for r in range(16)]
        v += [f'v_mov_b32 v{C + 16*t + r}, v{m}' for r in range(16)]
        va.append(v)
    p.add(mm[:7]); p.add(spread(mm[7:], va[0] + va[1][:8], 0, 8))
    p.add(va[1][8:] + va[2] + va[3])
    p('K2_MAIN:')
    p('s_mov_b32 s28, 16384')
    p('s_mov_b32 s29, 14')
    pr.stamp()

    X = 68
    def deferred(t): return [f'v_add_f32 v{L + t}, v{L + t}, v{X + g}' for g in range(4)]
    def softmax(t, first):
        sb = S[t % 2]; pb = P[t % 2]; gaps = []
        for g in range(8):
            e0 = E + 2*(g % 2); e1 = e0 + 1
            if rs16 == 1 and g >= 4: e1 = X + g - 4
            cur = [f'v_exp_f32 v{e0}, v{sb + 2*g}', f'v_exp_f32 v{e1}, v{sb + 2*g + 1}']
            if rs16 == 0: cur += [f'v_add_f32 v{L + t}, v{L + t}, v{e0}', f'v_add_f32 v{L + t}, v{L + t}, v{e1}']
            if rs16 == 1:
                if g >= 4: cur.append(f'v_add_f32 v{L + t}, v{L + t}, v{e0}')
                elif not first: cur.append(deferred((t - 1) % 4)[g])
            cur.append(f'v_cvt_pk_bf16_f32 v{pb + g}, v{e0}, v{e1}')
            gaps.append(cur)
        return gaps
    def rsum(t, pb, s):
        return f'v_mfma_f32_16x16x32_bf16 {vr(D + 4*t, 4)}, {vr(SEL, 4)}, {vr(pb + 4*s, 4)}, {vr(D + 4*t, 4)}'
    def slot(T, t, last=False, first=False, side=None):
        par = T % 2
        nq = None if (last and t == 3) else (qk(par, t+1, S[(t+1) % 2], vr(C + 16*(t+1), 16)) if t < 3 else qk(1-par, 0, S[0], vr(C, 16)))
        pp = None if first else (pv(par, t-1, P[(t-1) % 2]) if t > 0 else pv(1-par, 3, P[1]))
        tp = (t - 1) % 4
        if nq and pp: m = [x for ab in zip(nq, pp) for x in ab] if inter else nq + pp
        else: m = (nq or []) + (pp or [])
        gaps = softmax(t, first)
        win = []
        kl = [Ins(f'global_load_dwordx4 {KA(par, s)}, v8, s[40:41] offset:{s*1024}', tag=f'K{par}') for s in range(4)]
        vl = [Ins(f'global_load_dwordx4 {VA(1-par, s)}, v8, s[42:43] offset:{s*1024}', tag=f'V{1-par}') for s in range(4)]
        if nold: kl = []; vl = []
        if noexp: gaps = [g[2:] for g in gaps]
        wpos = wp[t]
        if first: win = kl; wpos = 1
        elif t == 0 and not last: win = ['v_add_u32 v8, s28, v8'] + (['s_sub_u32 s29, s29, 1'] if par == 1 else [])
        elif t == 1: win = ([] if last else vl) + [f'V{par}']
        elif t == 2 and not last: win = kl + [f'K{1-par}']
        pre = {}; post = {}
        if pp and rs16:
            post.setdefault(wpos, []).append(rsum(tp, P[tp % 2], 0))
            if rs16 == 2: post.setdefault((wpos + 4) % 8, []).append(rsum(tp, P[tp % 2], 1))
        if first: pre[wpos] = win
        else: post.setdefault(wpos, []).extend(win)
        if side:
            for g in range(8): pre.setdefault(g, []).extend(side[(len(side)*g)//8:(len(side)*(g+1))//8])
        for g in range(8):
            k0 = (len(m)*g)//8; k1 = (len(m)*(g+1))//8
            if first: k0, k1 = g, g + 1
            for x in m[k0:k1] + pre.get(g, []) + gaps[g] + post.get(g, []):
                if isinstance(x, str) and len(x) == 2: p.waitfor(x)
                else: p.add([x])
    p.waitfor('K0')
    slot(-1, 3, first=True)
    p.waitfor('V1')
    p('K2_LOOP:')
    for T in range(2):
        for t in range(4): slot(T, t)
    p('s_cbranch_scc0 K2_LOOP')
    pr.stamp()
    if px1:
        if remap:
            p('''
            s_and_b32 s30, s2, 3
            s_lshl_b32 s30, s30, 5
            s_lshr_b32 s31, s2, 3
            s_add_u32 s30, s30, s31
            s_min_u32 s30, s30, 124
            s_bitcmp1_b32 s2, 2
            s_cselect_b32 s31, 125, 0
            s_add_u32 s30, s30, s31
            ''')
        else:
            p('''
            s_and_b32 s30, s2, 7
            s_min_u32 s31, s30, 2
            s_mul_i32 s30, s30, 31
            s_add_u32 s30, s30, s31
            s_lshr_b32 s31, s2, 3
            s_add_u32 s30, s30, s31
            s_min_u32 s30, s30, 249
            ''')
        p('''
        s_lshl_b32 s30, s30, 14
        v_lshlrev_b32 v10, 6, v0
        v_add_u32 v10, s30, v10
        global_load_dword v11, v10, s[4:5]
        ''')
    ow = lambda t: [f'ds_write_b128 v{OW[t]}, {ar(32*t + 4*j, 4)} offset:{j*1024}' for j in range(8)]
    slot(0, 0, last=True); slot(0, 1, last=True); slot(0, 2, last=True, side=[None]*0 + ow(0))
    slot(0, 3, last=True, side=ow(1))
    fin = pv(0, 3, P[1])
    if rs16: fin = [rsum(3, P[1], s) for s in range(rs16)] + fin
    lx = (deferred(3) if rs16 == 1 else []) + f'''
    v_permlane32_swap_b32 v{L}, v{L+1}
    v_permlane32_swap_b32 v{L+2}, v{L+3}
    v_add_f32 v{L}, v{L}, v{L+1}
    v_add_f32 v{L+2}, v{L+2}, v{L+3}
    '''.strip().split('\n')
    if rs16:
        lx += [f'v_cmp_gt_u32 vcc, 32, v2',
               f'v_cndmask_b32 v{D}, v{D+4}, v{D}, vcc', f'v_cndmask_b32 v{D+8}, v{D+12}, v{D+8}, vcc',
               f'v_add_f32 v{L}, v{L}, v{D}', f'v_add_f32 v{L+2}, v{L+2}, v{D+8}']
    lx += [f'ds_write_b32 v9, v{L} offset:{K2_LST}', f'ds_write_b32 v14, v{L+2} offset:{K2_LST}']
    p.add(fin[:rs16 + 2]); p.add(ow(2)[:4]); p.add(fin[rs16 + 2:]); p.add(ow(2)[4:]); p.add(lx)
    p.barrier()
    pr.stamp()
    p(f'''
    ds_read_b128 v[16:19], v7 offset:{K2_LST}
    ds_read_b128 v[20:23], v7 offset:{K2_LST + 1024}
    ds_read_b128 v[24:27], v{LRD} offset:{K2_LST}
    ''')
    T0 = 32; NT = 8
    rd = [(sg, j) for j in range(8) for sg in range(3)]
    for n in range(NT): p(f'ds_read_b128 {vr(T0 + 4*n, 4)}, v{ORD} offset:{rd[n][0]*8192 + rd[n][1]*1024}')
    p(f'''
    v_max3_f32 v16, v16, v17, v18
    v_max3_f32 v20, v20, v21, v22
    v_max3_f32 v16, v16, v19, v23
    v_max_f32 v16, v16, v20
    v_cmp_lt_f32 vcc, {fhex(LIMIT)}, v16
    v_add_f32 v24, v24, v25
    v_add_f32 v26, v26, v27
    s_cmp_eq_u32 s36, 0
    s_cselect_b64 s[30:31], vcc, 0
    s_cmp_lg_u64 s[30:31], 0
    s_cbranch_scc1 K2_FB
    v_add_f32 v24, v24, v26
    v_rcp_f32 v24, v24
    v_mul_f32 v24, {fhex(-KSC)}, v24
    ''')
    for n, (sg, j) in enumerate(rd):
        for r in range(4): p(f'v_add_f32 v{O3 + 4*j + r}, v{O3 + 4*j + r}, v{T0 + 4*(n % NT) + r}')
        if n + NT < len(rd): p(f'ds_read_b128 {vr(T0 + 4*(n % NT), 4)}, v{ORD} offset:{rd[n+NT][0]*8192 + rd[n+NT][1]*1024}')
    for a in range(4):
        for k in range(8):
            r = O3 + 16*(k // 4) + 4*(k % 4) + a
            p(f'v_mul_f32 v{r}, v{r}, v24')
        for k in range(4):
            r = O3 + 16*(k // 2) + 8*(k % 2) + a
            p(f'v_cvt_pk_bf16_f32 v{T0 + 4*a + k}, v{r}, v{r + 4}')
        p(f'buffer_store_dwordx4 {vr(T0 + 4*a, 4)}, v15, s[20:23], s37 offen offset:{a*128} {st}')
    pr.end()
    p('K2_END:')
    p('s_endpgm')

    p('K2_FB:')
    p('s_mov_b32 s36, 1')
    p('s_mov_b32 s28, 0')
    p('v_lshl_add_u32 v8, v1, 12, v7')
    p('v_add_u32 v8, 4096, v8')
    for t in range(4): p(f'v_sub_f32 v{L + t}, 0, v{C + 16*t}')
    p('K2_FBL:')
    for s in range(4): p(f'buffer_load_dwordx4 {KA(0, s)}, v8, s[12:15], s28 offen offset:{s*1024}')
    for t in range(4):
        p.add(qk(0, t, S[t % 2], '0'))
        for k in range(0, 16, 2): p(f'v_max3_f32 v{L + t}, v{L + t}, v{S[t % 2] + k}, v{S[t % 2] + k + 1}')
    p(f'''
    s_add_u32 s28, s28, 16384
    s_cmp_lt_u32 s28, {31*16384}
    s_cbranch_scc1 K2_FBL
    v_permlane32_swap_b32 v{L}, v{L+1}
    v_permlane32_swap_b32 v{L+2}, v{L+3}
    v_max_f32 v{L}, v{L}, v{L+1}
    v_max_f32 v{L+2}, v{L+2}, v{L+3}
    ''')
    p.barrier()
    p(f'ds_write_b32 v9, v{L} offset:{K2_LST}')
    p(f'ds_write_b32 v14, v{L+2} offset:{K2_LST}')
    p.barrier()
    ld0(); ld1(); ld2()
    for t in range(4):
        p(f's_add_u32 s30, s3, {t+1}')
        p(f's_and_b32 s30, s30, 3')
        p(f's_lshl_b32 s30, s30, 9')
        p(f'v_lshl_add_u32 v16, v5, 4, s30')
        p(f'ds_read_b128 v[20:23], v16 offset:{K2_LST}')
        p(f'v_max3_f32 v20, v20, v21, v22')
        p(f'v_min_f32_e64 v20, -v20, -v23')
        for r in range(16): p(f'v_mov_b32 v{C + 16*t + r}, v20')
    p.barrier()
    p.add(zero())
    p.add(qk(1, 3, S[1], vr(C + 48, 16)))
    p('s_nop 7')
    p('s_branch K2_MAIN')
    p.cfgs = [{}, {'K2_END': [True]}, {'K2_FB': [True, False]}]
    return p

if __name__ == '__main__':
    p = gen_k2(); t = p.emit(); print(p.stats()); print(len(t.split('\n')))
    open('k2.txt', 'w').write(t)
```

```python
from gen_common import *

L_ATT = 0
L_LN2 = 24576
L_CV = 49152
L_ST = 69632
L_DW = 75776
L_H = 83968
K3_LDS = L_H + 65536
SH = 112
SC = 80

class Delay:
    def __init__(self, c): self.c = c

def gen_k3(prof=False, R=64, lamin=16, n0=20, grp=2, lat=700, ahead=64, xcd=True, st='', pst=False):
    p = Prog('k3'); pr = Prof(p, prof, 2); p.align = False
    Z = lambda mt, pp, u: 16 + 16*mt + 8*pp + 4*u
    X1 = 64; SEL = 88; FR = 96; AC = 192; T = 240
    VW = 8; M = [9, 10, 11]; VDW = 12; VH = 13; VST = 14; VRS = 15; VMK = 5; VTR = 6
    WE = 64; WD = 72
    pr.start()
    p('''
    s_cmp_ge_u32 s2, %d
    s_cbranch_scc1 K3_END
    s_load_dwordx2 s[4:5], s[0:1], 96
    s_load_dwordx2 s[6:7], s[0:1], 48
    s_load_dwordx2 s[8:9], s[0:1], 80
    v_lshrrev_b32 v1, 6, v0
    v_and_b32 v2, 63, v0
    v_readfirstlane_b32 s3, v1
    v_and_b32 v3, 15, v2
    v_lshrrev_b32 v4, 4, v2
    v_lshlrev_b32 v7, 4, v2
    ''' % (256 if xcd == 2 else 250))
    if xcd == 2:
        p('''
        s_and_b32 s10, s2, 3
        s_lshl_b32 s10, s10, 5
        s_lshr_b32 s11, s2, 3
        s_add_u32 s10, s10, s11
        s_cmp_ge_u32 s10, 125
        s_cbranch_scc1 K3_END
        s_bitcmp1_b32 s2, 2
        s_cselect_b32 s11, 125, 0
        s_add_u32 s10, s10, s11
        ''')
    elif xcd:
        p('''
        s_and_b32 s10, s2, 7
        s_min_u32 s11, s10, 2
        s_mul_i32 s10, s10, 31
        s_add_u32 s10, s10, s11
        s_lshr_b32 s11, s2, 3
        s_add_u32 s10, s10, s11
        ''')
    else: p('s_mov_b32 s10, s2')
    p('''
    s_cmp_ge_u32 s10, 125
    s_cselect_b32 s11, 125, 0
    s_sub_u32 s11, s10, s11
    s_lshl_b32 s12, s10, 14
    s_cmp_eq_u32 s11, 0
    s_cselect_b32 s13, 0, -4096
    s_cselect_b32 s16, 0, -1
    s_cmp_eq_u32 s11, 124
    s_cselect_b32 s14, 3, 4
    s_cselect_b32 s17, 0, -1
    s_lshl_b32 s14, s14, 12
    v_and_b32 v5, 7, v3
    v_lshlrev_b32 v5, 4, v5
    v_lshl_add_u32 v5, v4, 7, v5
    v_lshl_add_u32 v5, v1, 10, v5
    v_add_u32 v5, s12, v5
    v_lshrrev_b32 v6, 3, v3
    v_lshl_add_u32 v9, v6, 12, v5
    v_add_u32 v10, 8192, v9
    v_mov_b32 v11, s13
    v_mov_b32 v12, s14
    v_cmp_gt_u32 vcc, 8, v3
    v_cndmask_b32 v11, v12, v11, vcc
    v_add_u32 v11, v11, v5
    v_lshrrev_b32 v12, 3, v2
    v_and_b32 v13, 7, v2
    v_lshlrev_b32 v13, 4, v13
    v_lshl_add_u32 v13, v1, 7, v13
    v_add_u32 v14, 8, v12
    v_min_u32 v14, 14, v14
    v_lshl_add_u32 v12, v12, 9, v13
    v_lshl_add_u32 v13, v14, 9, v13
    s_lshl_b32 s18, s3, 11
    s_mul_i32 s19, s3, %d
    ''' % WP_STREAM)
    p(f'''
    s_add_u32 s20, s4, {WS_ATT}
    s_addc_u32 s21, s5, 0
    s_add_u32 s22, s4, {WS_WP}
    s_addc_u32 s23, s5, 0
    s_add_u32 m0, s18, {L_ATT}
    v_add_u32 v{VW}, s19, v7
    ''')
    if prof: p('s_nop 0'); pr.stamp()
    for mt in range(3):
        for pp in range(2):
            p(f'global_load_lds_dwordx4 v{M[mt]}, s[20:21] offset:{pp*512}', tag='att')
            if (mt, pp) != (2, 1): p(f's_add_u32 m0, m0, {512 if pp == 0 else 8192 - 512}')
    order = list(range(32))
    for q in range(4):
        for s in range(8):
            for ab in range(2): order.append(32 + 8*s + 4*ab + q)
    order += list(range(96, 384))
    pos = {f: n for n, f in enumerate(order)}
    Wr = lambda f: ar(4*(pos[f] % 64), 4)
    state = {'cur': 4096, 'n': 0}
    p(f'v_add_u32 v{VW}, 4096, v{VW}')
    def load():
        n = state['n']; off = order[n]*1024; out = []
        if not (-4096 <= off - state['cur'] <= 3072):
            new = off + 4096 if not (32 <= n < 96) else (off // 8192)*8192 + 4096
            out.append(Ins(f'v_add_u32 v{VW}, {hex((new - state["cur"]) & 0xffffffff)}, v{VW}')); state['cur'] = new
        out.append(Ins(f'global_load_dwordx4 {ar(4*(n % 64), 4)}, v{VW}, s[22:23] offset:{off - state["cur"]}', tag=f'w{n}'))
        state['n'] = n + 1
        return out
    if pst: pr.stamp()
    for n in range(4): p.add(load())
    if pst: pr.stamp()
    for mt in range(3):
        for pp in range(2):
            p(f'global_load_dwordx4 {vr(X1 + 8*mt + 4*pp, 4)}, v{M[mt]}, s[4:5] offset:{pp*512}')
    if pst: pr.stamp()
    p(f's_add_u32 m0, s18, {L_DW}')
    p(f'global_load_lds_dwordx4 v12, s[6:7]', tag='dw')
    p(f's_add_u32 m0, m0, 1024')
    p(f'global_load_lds_dwordx4 v13, s[6:7]', tag='dw')
    if pst: pr.stamp()
    ini = f'''
    v_lshrrev_b32 v12, 2, v3
    v_and_b32 v13, 1, v3
    v_lshlrev_b32 v13, 4, v13
    v_mov_b32 v14, 0x3f80
    v_lshlrev_b32 v13, v13, v14
    v_cmp_eq_u32 vcc, v12, v4
    v_cndmask_b32 v13, 0, v13, vcc
    v_and_b32 v12, 2, v3
    v_cmp_eq_u32 vcc, 0, v12
    v_cndmask_b32 v{SEL+2}, 0, v13, vcc
    v_cndmask_b32 v{SEL+3}, v13, 0, vcc
    v_mov_b32 v{SEL}, 0
    v_mov_b32 v{SEL+1}, 0
    v_mov_b32 v{SEL+4}, 0
    v_mov_b32 v{SEL+5}, 0
    v_cndmask_b32_e64 v{VMK}, 0, -1, s[16:17]
    v_lshlrev_b32 v{VDW}, 1, v2
    v_add_u32 v{VDW}, s18, v{VDW}
    v_add_u32 v{VDW}, {L_DW}, v{VDW}
    v_lshl_add_u32 v{VST}, v1, 2, v7
    v_add_u32 v{VST}, {L_ST}, v{VST}
    v_lshlrev_b32 v{VRS}, 4, v3
    v_add_u32 v{VRS}, {L_ST}, v{VRS}
    v_lshrrev_b32 v{VTR}, 2, v3
    v_lshl_add_u32 v{VTR}, v4, 3, v{VTR}
    v_mul_u32_u24 v{VTR}, {SC}, v{VTR}
    v_and_b32 v9, 3, v3
    v_lshl_add_u32 v{VTR}, v9, 3, v{VTR}
    v_add_u32 v{VTR}, {L_CV}, v{VTR}
    s_lshl_b32 s19, s3, 14
    s_add_u32 s19, s19, {L_H}
    v_lshrrev_b32 v10, 2, v3
    v_lshl_add_u32 v9, v10, 3, v9
    v_mul_u32_u24 v9, {SH}, v9
    v_add_u32 v9, s19, v9
    v_lshl_add_u32 v10, v4, 3, v9
    v_add_u32 v9, 16, v10
    v_mov_b32 v11, 64
    v_cmp_lt_u32 vcc, 31, v2
    v_cndmask_b32 v11, 0, v11, vcc
    v_add_u32 v10, v10, v11
    v_add_u32 v11, s18, v7
    v_add_u32 v{VH}, s19, v7
    '''
    ini = [l.strip() for l in ini.strip().split('\n')]
    lds = [load() for n in range(n0 - 4)]
    body = spread(ini, [x for l in lds for x in l])
    if pst:
        h = len(body)//2; p.add(body[:h]); pr.stamp(); p.add(body[h:])
    else: p.add(body)
    VG, VGH, VF = 9, 10, 11

    B = []
    def e(x):
        if isinstance(x, str):
            for l in x.strip().split('\n'):
                if l.strip(): B.append(Ins(l.strip()))
        elif isinstance(x, list):
            for y in x: e(y)
        else: B.append(x)
    def mf(d, f, b, c=None, swap=False):
        a1, a2 = (vr(b, 4), Wr(f)) if swap else (Wr(f), vr(b, 4))
        i = Ins(f'v_mfma_f32_16x16x32_bf16 {vr(d, 4)}, {a1}, {a2}, {vr(d, 4) if c is None else c}'); i.key = pos[f]; return i
    def wait(*tags):
        i = Ins('s_waitcnt vmcnt(63)'); i.kind = 'tagwait'; i.waittags = set(tags); i.wv = None; return i
    def wgrp(fs): return wait(f'w{max(pos[f] for f in fs)}')
    def barrier():
        e(Ins('s_barrier'))
    def stamp():
        if prof and pr.n < 13:
            n = pr.n; pr.n += 1; e(f's_memtime s[{70+2*n}:{71+2*n}]')
    def I(l): return [Ins(x) if isinstance(x, str) else x for x in l]

    stamp(); e(wait('att')); barrier(); stamp()
    F3 = lambda mt, s: FR + 12*s + 4*mt
    rd = lambda s: [f'ds_read_b128 {vr(F3(mt, s), 4)}, v7 offset:{L_ATT + mt*8192 + s*1024}' for mt in range(3)]
    e(rd(0) + rd(1)); e(Delay(100))
    for s in range(8):
        m = [mf(Z(mt, pp, u), 4*s + 2*pp + u, F3(mt, s), '0' if s == 0 else None) for pp in range(2) for u in range(2) for mt in range(3)]
        e(wgrp(range(4*s, 4*s + 4)))
        e(m[:1] + (I(rd(s + 2)) if s < 6 else []) + m[1:])
    for pp in range(2):
        for mt in range(3):
            for u in range(2):
                e(f'v_mfma_f32_16x16x32_bf16 {vr(Z(mt, pp, u), 4)}, {vr(SEL + 2 - 2*u, 4)}, {vr(X1 + 8*mt + 4*pp, 4)}, {vr(Z(mt, pp, u), 4)}')
    stamp()
    def stats(nm, region):
        out = []
        ch = []
        for mt in range(nm):
            z = 16 + 16*mt; a = T + 2*mt; b = a + 1
            c = [f'v_add_f32 v{a}, v{z}, v{z+1}', f'v_mul_f32 v{b}, v{z}, v{z}', f'v_fmac_f32 v{b}, v{z+1}, v{z+1}']
            for k in range(2, 16): c += [f'v_add_f32 v{a}, v{a}, v{z+k}', f'v_fmac_f32 v{b}, v{z+k}, v{z+k}']
            ch.append(c)
        for k in range(len(ch[0])):
            for c in ch: out.append(c[k])
        out += [f'v_permlane32_swap_b32 v{T}, v{T+2}', f'v_permlane32_swap_b32 v{T+1}, v{T+3}']
        if nm == 3: out += [f'v_permlane32_swap_b32 v{T+4}, v{T+5}']
        out += [f'v_add_f32 v{T}, v{T}, v{T+2}', f'v_add_f32 v{T+1}, v{T+1}, v{T+3}']
        if nm == 3: out += [f'v_add_f32 v{T+4}, v{T+4}, v{T+5}', f'v_add_f32 v{T+5}, 0, v{T+4}']
        out += [f'v_permlane16_swap_b32 v{T}, v{T+1}']
        if nm == 3: out += [f'v_permlane16_swap_b32 v{T+4}, v{T+5}']
        out += [f'v_add_f32 v{T}, v{T}, v{T+1}', f'ds_write_b32 v{VST}, v{T} offset:{region}']
        if nm == 3: out += [f'v_add_f32 v{T+4}, v{T+4}, v{T+5}', f'ds_write_b32 v{VST}, v{T+4} offset:{region + 1024}']
        return out
    def rstats(nm, region, base, scale):
        offs = [(0, 256), (512, 768), (1024, 1536)]
        out = []
        for mt in range(nm):
            for k in range(2): out.append(f'ds_read_b128 {vr(base + 8*mt + 4*k, 4)}, v{VRS} offset:{region + offs[mt][k]}')
        out.append(Delay(100))
        ch = []
        for mt in range(nm):
            a = base + 8*mt; b = a + 4; r = T + 2*mt
            ch.append([f'v_add_f32 v{a}, v{a}, v{a+1}', f'v_add_f32 v{b}, v{b}, v{b+1}', f'v_add_f32 v{a+2}, v{a+2}, v{a+3}', f'v_add_f32 v{b+2}, v{b+2}, v{b+3}',
                       f'v_add_f32 v{a}, v{a}, v{a+2}', f'v_add_f32 v{b}, v{b}, v{b+2}',
                       f'v_mul_f32 v{a}, s24, v{a}', f'v_mul_f32 v{a+1}, v{a}, v{a}', f'v_fma_f32 v{b}, v{b}, s24, -v{a+1}',
                       f'v_max_f32 v{b}, 0, v{b}', f'v_add_f32 v{b}, s25, v{b}', f'v_rsq_f32 v{b}, v{b}',
                       f'v_mul_f32 v{r}, {fhex(scale)}, v{b}', f'v_mul_f32_e64 v{r+1}, -v{a}, v{r}'])
        for k in range(len(ch[0])):
            for c in ch: out.append(c[k])
        return out
    def norm(mt, pp, tmp):
        z = Z(mt, pp, 0); r = T + 2*mt
        out = [f'v_fma_f32 v{tmp + k}, v{z + k}, v{r}, v{r+1}' for k in range(8)]
        out += [f'v_cvt_pk_bf16_f32 v{tmp + k}, v{tmp + 2*k}, v{tmp + 2*k + 1}' for k in range(4)]
        return out
    e(f's_mov_b32 s24, {fhex(1/256)}')
    e(f's_mov_b32 s25, {fhex(EPS*KSC*KSC)}')
    e(stats(3, 0))
    e(wait('dw'))
    for q in range(15): e(f'ds_read_u16 v{FR + q}, v{VDW} offset:{q*128}')
    barrier()
    e(rstats(3, 0, AC, LOG2E))
    for mt in range(3):
        for pp in range(2):
            tmp = AC + 8*(2*mt + pp)
            e(norm(mt, pp, tmp))
            e(f'ds_write_b128 v{VF}, {vr(tmp, 4)} offset:{L_LN2 + mt*8192 + pp*1024}')
    e(f'v_lshlrev_b32 v{WD}, 16, v{FR}')
    e(f'v_mov_b32 v{WE + 7}, v{FR + 14}')
    for q in range(7):
        e(f'v_lshl_or_b32 v{WE + q}, v{FR + 2*q + 1}, 16, v{FR + 2*q}')
        e(f'v_lshl_or_b32 v{WD + q + 1}, v{FR + 2*q + 2}, 16, v{FR + 2*q + 1}')
    barrier(); stamp()

    rd = lambda s: [f'ds_read_b128 {vr(F3(mt, s), 4)}, v7 offset:{L_LN2 + mt*8192 + s*1024}' for mt in range(3)]
    PA = lambda q, ab, mt: AC + 24*(q % 2) + 12*ab + 4*mt
    def glu(q):
        out = []
        st_ = []
        for mt in range(3):
            for r in range(4):
                a = PA(q, 0, mt) + r; b = PA(q, 1, mt) + r
                st_.append([f'v_exp_f32 v{b}, v{b}', f'v_add_f32 v{b}, 1.0, v{b}', f'v_rcp_f32 v{b}, v{b}', f'v_mul_f32 v{a}, v{a}, v{b}'])
        for k in range(12 + 3):
            for ph in range(4):
                j = k - ph
                if 0 <= j < 12: out.append(st_[j][ph])
            j = k - 3
            if 0 <= j < 12 and j % 4 == 3:
                mt = j // 4; a = PA(q, 0, mt)
                out += [f'v_cvt_pk_bf16_f32 v{a}, v{a}, v{a+1}', f'v_cvt_pk_bf16_f32 v{a+1}, v{a+2}, v{a+3}']
                if mt == 2: out += [f'v_and_b32 v{a}, v{VMK}, v{a}', f'v_and_b32 v{a+1}, v{VMK}, v{a+1}']
                out.append(f'ds_write_b64 v{VGH if mt == 2 else VG}, {vr(a, 2)} offset:{(32*(q // 2) + 4*(q % 2))*SH + (32*mt if mt < 2 else 0)}')
        return out
    e(rd(0) + rd(1)); e(Delay(100))
    for q in range(4):
        m = []
        for s in range(8):
            fs = [32 + 8*s + 4*ab + q for ab in range(2)]
            if s % 2 == 0: m.append(wgrp(fs + [f + 8 for f in fs]))
            mm = [mf(PA(q, ab, mt), fs[ab], F3(mt, s), '0' if s == 0 else None, swap=True) for ab in range(2) for mt in range(3)]
            if q == 0 and s < 6: mm = mm[:1] + I(rd(s + 2)) + mm[1:]
            m += mm
        if q > 0: m = spread(m, I(glu(q - 1)), 3)
        e(m)
    stamp()
    e(glu(3))
    HX = FR; CO = FR + 32; TE = FR + 64
    e(f'v_mul_u32_u24 v{T}, {SH}, v2')
    e(f'v_add_u32 v{T}, s19, v{T}')
    for k in range(6): e(f'ds_read_b128 {vr(HX + 4*k, 4)}, v{T} offset:{16*k}')
    e(f'v_lshl_add_u32 v{T+1}, v1, 6, v2')
    e(f'v_mul_u32_u24 v{T+1}, {SC}, v{T+1}')
    e(Delay(100))
    def dots(g):
        out = []
        for q in range(8):
            for t in range(4*g, 4*g + 4):
                w = (WE if t % 2 else WD) + q; h = HX + (t + 1)//2 + q
                out.append(f'v_dot2_f32_bf16 v{CO + t}, v{h}, v{w}, 0' if q == 0 else f'v_dot2c_f32_bf16 v{CO + t}, v{h}, v{w}')
        return out
    def csilu(g):
        out = []
        for ph in range(4):
            for t in range(4*g, 4*g + 4):
                x = TE + t % 4
                out.append([f'v_exp_f32 v{x}, v{CO + t}', f'v_fma_f32 v{x}, v{x}, 0.5, 0.5', f'v_rcp_f32 v{x}, v{x}', f'v_mul_f32 v{CO + t}, v{CO + t}, v{x}'][ph])
        o = TE + 4 + 4*((g // 2) % 2) + 2*(g % 2)
        out += [f'v_cvt_pk_bf16_f32 v{o}, v{CO + 4*g}, v{CO + 4*g + 1}', f'v_cvt_pk_bf16_f32 v{o + 1}, v{CO + 4*g + 2}, v{CO + 4*g + 3}']
        if g % 2: out.append(f'ds_write_b128 v{T+1}, {vr(o - 2, 4)} offset:{L_CV + 16*(g // 2)}')
        return out
    for g in range(9):
        d = dots(g) if g < 8 else []
        c = csilu(g - 1) if g > 0 else []
        e(spread(d, c, 2) if d and c else d + c)
    barrier(); stamp()

    F2 = lambda mt, s: FR + 8*s + 4*mt
    rd = lambda s: [f'ds_read_b64_tr_b16 {vr(F2(mt, s) + 2*hf, 2)}, v{VTR} offset:{s*32*SC + hf*4*SC + mt*32}' for mt in range(2) for hf in range(2)]
    e(rd(0) + rd(1)); e(Delay(100))
    for s in range(8):
        m = [mf(Z(mt, pp, u), 96 + 4*s + 2*pp + u, F2(mt, s)) for pp in range(2) for u in range(2) for mt in range(2)]
        e(wgrp(range(96 + 4*s, 100 + 4*s)))
        e(m[:1] + (I(rd(s + 2)) if s < 6 else []) + m[1:])
    stamp()
    e(stats(2, 2048)); barrier()
    e(rstats(2, 2048, AC, LOG2E))
    for mt in range(2):
        for pp in range(2):
            tmp = AC + 8*(2*mt + pp)
            e(norm(mt, pp, tmp))
            e(f'ds_write_b128 v{VF}, {vr(tmp, 4)} offset:{L_ATT + mt*8192 + pp*1024}')
    barrier(); stamp()

    rd = lambda s: [f'ds_read_b128 {vr(F2(mt, s), 4)}, v7 offset:{L_ATT + mt*8192 + s*1024}' for mt in range(2)]
    HA = lambda nb, mt, pp, u: 160 + 32*(nb % 2) + 16*mt + 8*pp + 4*u
    TS = 224
    def silu(nb):
        out = []; st_ = []
        for k in range(32):
            a = HA(nb, 0, 0, 0) + k; x = TS + k % 4
            st_.append([f'v_exp_f32 v{x}, v{a}', f'v_add_f32 v{x}, 1.0, v{x}', f'v_rcp_f32 v{x}, v{x}', f'v_mul_f32 v{a}, v{a}, v{x}'])
        for k in range(32 + 3):
            for ph in range(4):
                j = k - ph
                if 0 <= j < 32: out.append(st_[j][ph])
            j = k - 3
            if 0 <= j < 32 and j % 2 == 1:
                a = HA(nb, 0, 0, 0); o = TS + 4 + 4*((j // 8) % 2)
                out.append(f'v_cvt_pk_bf16_f32 v{o + (j % 8)//2}, v{a + j - 1}, v{a + j}')
                if j % 8 == 7:
                    mt = j // 16; pp = (j // 8) % 2
                    out.append(f'ds_write_b128 v{VH}, {vr(o, 4)} offset:{(2*nb + pp)*2048 + mt*1024}')
        return out
    e(rd(0) + rd(1) + rd(2)); e(Delay(100))
    for nb in range(4):
        m = []
        for s in range(8):
            f0 = 128 + 32*nb + 4*s
            m.append(wgrp(range(f0, f0 + 4)))
            mm = [mf(HA(nb, mt, pp, u), f0 + 2*pp + u, F2(mt, s), '0' if s == 0 else None) for pp in range(2) for u in range(2) for mt in range(2)]
            if nb == 0 and s < 5: mm = mm[:1] + I(rd(s + 3)) + mm[1:]
            m += mm
        if nb > 0: m = spread(m, I(silu(nb - 1)), 3)
        e(m)
    stamp()
    e(silu(3))
    e(f'v_add_u32 v{T}, {L_H}, v7')
    barrier(); stamp()
    FH = lambda mt, s: FR + 8*(s % 8) + 4*mt
    rd = lambda s: [f'ds_read_b128 {vr(FH(mt, s), 4)}, v{T} offset:{s*2048 + mt*1024}' for mt in range(2)]
    e(rd(0) + rd(1) + rd(2)); e(Delay(100))
    for s in range(32):
        m = [mf(Z(mt, pp, u), 256 + 4*s + 2*pp + u, FH(mt, s)) for pp in range(2) for u in range(2) for mt in range(2)]
        e(wgrp(range(256 + 4*s, 260 + 4*s)))
        e(m[:1] + (I(rd(s + 3)) if s < 29 else []) + m[1:])
        if s == 28:
            e(f'''
            s_add_u32 s8, s8, s12
            s_addc_u32 s9, s9, 0
            v_lshlrev_b32 v9, 9, v3
            v_lshl_add_u32 v9, v1, 7, v9
            v_lshl_add_u32 v9, v4, 4, v9
            v_add_u32 v10, 8192, v9
            ''')
    stamp()
    e(stats(2, 4096)); barrier()
    e(rstats(2, 4096, AC, -1.0))
    for mt in range(2):
        for pp in range(2):
            tmp = AC + 8*(2*mt + pp)
            e(norm(mt, pp, tmp))
            e(f'global_store_dwordx4 v{9 + mt}, {vr(tmp, 4)}, s[8:9] offset:{pp*64} {st}')

    last = {}
    for k, i in enumerate(B):
        if isinstance(i, Ins) and i.kind == 'mfma' and i.key is not None: last[i.key] = k
    nxt_mfma = [False]*len(B)
    t = n0*R; tm = 0; it = {n: n*R for n in range(n0)}; pipe = n0*R; freed = -1; log = []
    free_at = {k: n for n, k in last.items()}
    maxuse = -1
    for k, i in enumerate(B):
        if isinstance(i, Delay): t += i.c; continue
        if i.kind == 'tagwait':
            for tg in i.waittags:
                if tg[0] == 'w':
                    n = int(tg[1:]); assert n < state['n'], (n, state['n']); t = max(t, it[n] + lat); maxuse = max(maxuse, n)
            t += 4
        elif i.kind == 'mfma': t = max(t, tm + 16); tm = t; t += 8
        elif i.kind == 'barrier': t += 60
        elif i.op in TRANS: t += 8
        else: t += 4
        p.ins.append(i)
        if '_memtime' in i.op: log.append((t, state['n'], maxuse))
        if k in free_at: freed = free_at[k]
        near = any(isinstance(x, Ins) and x.kind == 'mfma' for x in B[k+1:k+7])
        if i.kind == 'mfma' or not near:
            ok = lambda n: n < 384 and n - 64 <= freed and n <= maxuse + 59
            if ok(state['n']) and (t >= pipe - ahead or state['n'] <= maxuse + lamin):
                c = 0
                while ok(state['n']) and c < grp:
                    n = state['n']
                    for x in load(): p.ins.append(x); t += 4
                    pipe = max(pipe, t) + R; it[n] = pipe; t = max(t, pipe - 3*R); c += 1
                if i.kind != 'mfma': t += 8
    assert state['n'] == 384
    p.model = (log, t)
    pr.end()
    p('K3_END:')
    p('s_endpgm')
    p.cfgs = [{}, {'K3_END': [True]}]; p.grid = 256 if xcd == 2 else 250
    return p

if __name__ == '__main__':
    p = gen_k3(prof=True); t = p.emit(); print(p.stats()); print(len(t.split('\n'))); print(p.model)
    open('k3.txt', 'w').write(t)
```
